```python
import torch

def _softmax(x, axis=-1):
    return torch.softmax(x, dim=axis)
def _gelu(x):
    return torch.nn.functional.gelu(x, approximate="tanh")
def _silu(x):
    return torch.nn.functional.silu(x)
def _sigmoid(x):
    return torch.sigmoid(x)
def _layernorm(x, axis=-1, eps=1e-5):
    m = x.mean(dim=axis, keepdim=True)
    v = x.var(dim=axis, keepdim=True, unbiased=False)
    return (x - m) / torch.sqrt(v + eps)
def _scatter_add(tgt, idx, src, axis=0):
    return tgt.clone().index_add_(axis, idx, src)
def _segment_sum(src, seg, n):
    out = torch.zeros((n,) + src.shape[1:], dtype=src.dtype)
    return out.index_add_(0, seg, src)
def _pad(x, pw):
    flat = tuple(v for pair in reversed(pw) for v in pair)
    return torch.nn.functional.pad(x, flat)

kernel_name = 'parallel_sum__linear_kernel_hedgehog__moe_arch_mod__prompt'

def setup_inputs():

    _w = (lambda a: (lambda t: t.to(torch.bfloat16) if t.is_floating_point() else t)(torch.as_tensor(a)))
    def _A_setup():
        B, S, D, H = 1, 2048, 640, 32
        Dh = D // H
        return {
            "x": _w((lambda *s: torch.randn(*s, dtype=torch.bfloat16) * 0.05)(B, S, D)),
            "wqkv": _w((lambda *s: torch.randn(*s, dtype=torch.bfloat16) * 0.4)(D, 3 * D)),
            "w_phi": _w((lambda *s: torch.randn(*s, dtype=torch.bfloat16) * 0.4)(H, Dh, Dh) * (Dh ** -0.5)),
            "wo": _w((lambda *s: torch.randn(*s, dtype=torch.bfloat16) * 0.1)(D, D)),
        }
    _A_in = _A_setup()

    def _B_setup():
        B, S, D, F, C = 1, 2048, 640, 1536, 1
        return {
            "x": _w((lambda *s: torch.randn(*s, dtype=torch.bfloat16) * 0.05)(B, S, D)),
            "w_r": _w((lambda *s: torch.randn(*s, dtype=torch.bfloat16) * 0.05)(D)),
            "w_gate": _w((lambda *s: torch.randn(*s, dtype=torch.bfloat16) * 0.05)(D, F)),
            "w_up": _w((lambda *s: torch.randn(*s, dtype=torch.bfloat16) * 0.05)(D, F)),
            "w_down": _w((lambda *s: torch.randn(*s, dtype=torch.bfloat16) * 0.05)(F, D)),
        }
    _B_in = _B_setup()

    return {
        "A_x": _A_in["x"],
        "A_wqkv": _A_in["wqkv"],
        "A_w_phi": _A_in["w_phi"],
        "A_wo": _A_in["wo"],
        "B_x": _B_in["x"],
        "B_w_r": _B_in["w_r"],
        "B_w_gate": _B_in["w_gate"],
        "B_w_up": _B_in["w_up"],
        "B_w_down": _B_in["w_down"],
    }

def reference(A_x, A_wqkv, A_w_phi, A_wo, B_x, B_w_r, B_w_gate, B_w_up, B_w_down):
    def _A_ref(x, wqkv, w_phi, wo):
        B, S, D = x.shape
        H = 32; Dh = D // H
        qkv = (lambda x, *d: x.permute(*d))((x @ wqkv).reshape(B, S, 3, H, Dh), 2, 0, 3, 1, 4)
        q, k, v = qkv[0], qkv[1], qkv[2]
        pq = torch.einsum("bhsd,hdf->bhsf", q, w_phi)
        pk = torch.einsum("bhsd,hdf->bhsf", k, w_phi)
        phi_q = torch.concatenate([_softmax(pq, axis=-1), _softmax(-pq, axis=-1)], axis=-1)
        phi_k = torch.concatenate([_softmax(pk, axis=-1), _softmax(-pk, axis=-1)], axis=-1)
        kv = torch.einsum("bhsf,bhsd->bhfd", phi_k, v)
        z  = torch.einsum("bhsf->bhf", phi_k)
        num = torch.einsum("bhqf,bhfd->bhqd", phi_q, kv)
        den = torch.einsum("bhqf,bhf->bhq", phi_q, z)[..., None] + 1e-6
        o = num / den
        return (lambda x, *d: x.permute(*d))(o, 0, 2, 1, 3).reshape(B, S, D) @ wo

    def _B_ref(x, w_r, w_gate, w_up, w_down):
        B, S, D = x.shape
        C = 1
        r = x @ w_r
        idx = torch.argsort(-r, axis=-1)[:, :C]
        idx_e = (lambda x, n, axis: torch.repeat_interleave(x, n, dim=axis))(idx.reshape(B, C, 1), D, axis=2)
        x_sel = (lambda x, i, axis: torch.take_along_dim(x, i, dim=axis))(x, idx_e, axis=1)
        g = _silu(x_sel @ w_gate)
        u = x_sel @ w_up
        y = (g * u) @ w_down
        r_sel = _sigmoid((lambda x, i, axis: torch.take_along_dim(x, i, dim=axis))(r, idx, axis=1))
        y = y * r_sel.reshape(B, C, 1)
        b_off = (torch.arange(B) * S).reshape(B, 1)
        flat_idx = (idx + b_off).reshape(B * C)
        zero = (x * 0.0).reshape(B * S, D)
        upd = _scatter_add(zero, flat_idx, y.reshape(B * C, D), axis=0)
        return x + upd.reshape(B, S, D)

    x = A_x
    xn = _layernorm(x, axis=-1)
    return x + _A_ref(xn, A_wqkv, A_w_phi, A_wo) + _B_ref(xn, B_w_r, B_w_gate, B_w_up, B_w_down)
```

```python
class Asm:
    def __init__(self):
        self.lines = []
        self.lbl = 0
    def __call__(self, s):
        for ln in s.strip("\n").split("\n"):
            self.lines.append("    " + ln.strip() if ln.strip() and not ln.strip().endswith(":") else ln.strip())
    def label(self, name):
        self.lines.append(name + ":")
    def newlabel(self, prefix="L"):
        self.lbl += 1
        return f"{prefix}_{self.lbl}"
    def text(self):
        return "\n".join(self.lines) + "\n"

def vr(a, n=1):
    return f"v{a}" if n == 1 else f"v[{a}:{a+n-1}]"
def sr(a, n=1):
    return f"s{a}" if n == 1 else f"s[{a}:{a+n-1}]"

WS_KVACC = 0
WS_STATS = 0x20000
WS_AMAX  = 0x28000
WS_YPART = 0x30000
WS_WOP   = 0x100000
WS_PQ    = 0x200000
WS_BYTES = 0x10000000

def kdesc(name, vgpr, sgpr=102):
    acc = (vgpr + 3) // 4 * 4
    return f""".p2align 6
.amdhsa_kernel {name}
  .amdhsa_next_free_vgpr {vgpr}
  .amdhsa_next_free_sgpr {sgpr}
  .amdhsa_accum_offset {acc}
  .amdhsa_group_segment_fixed_size 0
  .amdhsa_kernarg_size 96
  .amdhsa_user_sgpr_count 2
  .amdhsa_user_sgpr_kernarg_segment_ptr 1
  .amdhsa_system_sgpr_workgroup_id_x 1
.end_amdhsa_kernel
"""
def kstart(name):
    return f".globl {name}\n.p2align 8\n.type {name},@function\n{name}:\n"
```

```python
from common import *

L_WKV = 0
L_WQ0 = 102400
L_XST = 138240
L_WPHI = 156672
L_ZERO = 161472
L_WR = 162368
L_MISC = 163648
L_EX = 51200
EXP = 288
K1_LDS = 163840

S_X, S_W, S_WS, S_DBG, S_WPHI, S_WR, S_WO = 4, 8, 12, 16, 20, 24, 28
S_RB, S_PAIR, S_HALF, S_QIDX, S_LIGHT, S_WAVE = 32, 33, 34, 35, 36, 37
S_ONES, S_CLO, S_CHI, S_LOG2E = 68, 69, 70, 71

V_LANE = 1
V_XO0, V_XO1, V_WKVO, V_WQO, V_XSW, V_XSR, V_TRB = 2, 3, 4, 5, 6, 7, 8
ACC = 16
XF = 64
WF = 144
WOR = 184

def wq_slot(s):
    if s < 7: return L_WQ0 + 5120 * s
    if s < 10: return L_XST + 5120 * (s - 7)
    return L_WKV + 5120 * (s - 10)

def emit_softmax(a, P, OUT, T):
    for i in range(10):
        a(f"v_cvt_pk_bf16_f32 v{T+i}, v{ACC+2*i}, v{ACC+2*i+1}")
    for i in range(10):
        a(f"v_lshlrev_b32 v{P+2*i}, 16, v{T+i}")
        a(f"v_and_b32 v{P+2*i+1}, 0xffff0000, v{T+i}")
    MX, MN = T+10, T+11
    a(f"v_max3_f32 v{MX}, v{P}, v{P+1}, v{P+2}")
    a(f"v_min3_f32 v{MN}, v{P}, v{P+1}, v{P+2}")
    for i in range(3, 19, 2):
        a(f"v_max3_f32 v{MX}, v{MX}, v{P+i}, v{P+i+1}")
        a(f"v_min3_f32 v{MN}, v{MN}, v{P+i}, v{P+i+1}")
    a(f"v_max_f32 v{MX}, v{MX}, v{P+19}")
    a(f"v_min_f32 v{MN}, v{MN}, v{P+19}")
    AP, AM = T+12, T+13
    a(f"v_mul_f32 v{AP}, s{S_LOG2E}, v{MX}")
    a(f"v_mul_f32 v{AM}, s{S_LOG2E}, v{MN}")
    EM = T+16
    for i in range(20):
        a(f"v_fma_f32 v{ACC+i}, v{P+i}, s{S_LOG2E}, -v{AP}")
        a(f"v_fma_f32 v{EM+i}, -v{P+i}, s{S_LOG2E}, v{AM}")
    for i in range(20):
        a(f"v_exp_f32 v{ACC+i}, v{ACC+i}")
        a(f"v_exp_f32 v{EM+i}, v{EM+i}")
    SP, SM, SP2, SM2 = T+12, T+13, T+14, T+15
    a("s_nop 0")
    a(f"v_add_f32 v{SP}, v{ACC}, v{ACC+1}")
    a(f"v_add_f32 v{SM}, v{EM}, v{EM+1}")
    a(f"v_add_f32 v{SP2}, v{ACC+2}, v{ACC+3}")
    a(f"v_add_f32 v{SM2}, v{EM+2}, v{EM+3}")
    for i in range(4, 20, 2):
        a(f"v_add_f32 v{SP}, v{SP}, v{ACC+i}")
        a(f"v_add_f32 v{SM}, v{SM}, v{EM+i}")
        a(f"v_add_f32 v{SP2}, v{SP2}, v{ACC+i+1}")
        a(f"v_add_f32 v{SM2}, v{SM2}, v{EM+i+1}")
    a(f"v_add_f32 v{SP}, v{SP}, v{SP2}")
    a(f"v_add_f32 v{SM}, v{SM}, v{SM2}")
    a(f"v_rcp_f32 v{SP}, v{SP}")
    a(f"v_rcp_f32 v{SM}, v{SM}")
    a("s_nop 0")
    for i in range(20):
        a(f"v_mul_f32 v{ACC+i}, v{ACC+i}, v{SP}")
        a(f"v_mul_f32 v{EM+i}, v{EM+i}, v{SM}")
    for i in range(10):
        a(f"v_cvt_pk_bf16_f32 v{OUT+i}, v{ACC+2*i}, v{ACC+2*i+1}")
        a(f"v_cvt_pk_bf16_f32 v{OUT+10+i}, v{EM+2*i}, v{EM+2*i+1}")

def emit_project(a, PB, VA_PHI, AF):
    for t in range(5):
        b = AF + 12 * (t & 1)
        for c in range(3):
            a(f"ds_read_b64_tr_b16 v[{b+4*c}:{b+4*c+1}], v{VA_PHI} offset:{(8*c)*40 + 8*t}")
            if c < 2:
                a(f"ds_read_b64_tr_b16 v[{b+4*c+2}:{b+4*c+3}], v{VA_PHI} offset:{(8*c+4)*40 + 8*t}")
            else:
                a(f"v_mov_b32 v{b+4*c+2}, 0")
                a(f"v_mov_b32 v{b+4*c+3}, 0")
        a("s_waitcnt lgkmcnt(0)")
        a(f"v_mfma_f32_16x16x32_bf16 v[{ACC+4*t}:{ACC+4*t+3}], v[{b}:{b+3}], v[{PB}:{PB+3}], 0")
        a(f"v_mfma_f32_16x16x32_bf16 v[{ACC+4*t}:{ACC+4*t+3}], v[{b+4}:{b+7}], v[{PB+4}:{PB+7}], v[{ACC+4*t}:{ACC+4*t+3}]")
        a(f"v_mfma_f32_16x16x32_bf16 v[{ACC+4*t}:{ACC+4*t+3}], v[{b+8}:{b+11}], v[{PB+8}:{PB+11}], v[{ACC+4*t}:{ACC+4*t+3}]")
    a("s_nop 7")
    a("s_nop 1")

def emit_kloop(a, slots, light, first_pass):
    def reads(s, buf):
        base = slots[s]
        a(f"v_add_u32 v9, {base}, v{V_TRB}")
        for t in range(5):
            r = WF + 20 * buf + 4 * t
            a(f"ds_read_b64_tr_b16 v[{r}:{r+1}], v9 offset:{8*t}")
            a(f"ds_read_b64_tr_b16 v[{r+2}:{r+3}], v9 offset:{2560+8*t}")
    def mfmas(s, buf):
        for t in range(5):
            r = WF + 20 * buf + 4 * t
            c = f"v[{ACC+4*t}:{ACC+4*t+3}]" if s > 0 else "0"
            a(f"v_mfma_f32_16x16x32_bf16 v[{ACC+4*t}:{ACC+4*t+3}], v[{r}:{r+3}], v[{XF+4*s}:{XF+4*s+3}], {c}")
    if first_pass:
        for b in range(5):
            younger = 19 - (4*b+3)
            if light:
                younger += 7
                if b >= 1: younger += 3
                if b >= 2: younger += 4 * (b - 1)
                if b == 4: younger -= 2
            a(f"s_waitcnt vmcnt({younger}) lgkmcnt(0)")
            a("s_barrier")
            if b == 0:
                a("K1_AFTER_BAR0")
            if b == 1:
                a("K1_AFTER_BAR1")
            if light:
                lst = [7, 8, 9] if b == 0 else [x for x in range(10 + 4*(b-1), 10 + 4*b) if x < 20]
                for q in lst:
                    emit_wdma(a, V_WQO, q, wq_slot(q))
            for j in range(4):
                s = 4*b + j
                if j == 0:
                    reads(s, s & 1)
                if j < 3:
                    reads(s+1, (s+1) & 1)
                    a("s_waitcnt lgkmcnt(10)")
                else:
                    a("s_waitcnt lgkmcnt(0)")
                mfmas(s, s & 1)
    else:
        reads(0, 0)
        for s in range(20):
            if s < 19:
                reads(s+1, (s+1) & 1)
                a("s_waitcnt lgkmcnt(10)")
            else:
                a("s_waitcnt lgkmcnt(0)")
            mfmas(s, s & 1)

def emit_wdma(a, voff, s, ldsbase):
    a(f"s_add_u32 m0, s72, {ldsbase}")
    a(f"s_mov_b32 s39, {s*32*3840}")
    a("s_mov_b64 exec, s[66:67]")
    a(f"buffer_load_dwordx4 v{voff}, s[{S_W}:{S_W+3}], s39 offen lds")
    a("s_mov_b64 exec, -1")

def gen_k1():
    a = Asm()
    a.lines.append(kstart("k1_kernel"))
    a(f"""
s_cmp_ge_u32 s2, 256
s_cbranch_scc1 K1_END
s_load_dwordx8 s[48:55], s[0:1], 0
s_load_dwordx2 s[56:57], s[0:1], 40
s_load_dwordx4 s[60:63], s[0:1], 80
v_and_b32 v{V_LANE}, 63, v0
v_lshrrev_b32 v10, 6, v0
s_nop 0
v_readfirstlane_b32 s{S_WAVE}, v10
; decode
s_and_b32 s38, s2, 7
s_lshr_b32 s39, s2, 3
s_and_b32 s40, s38, 3
s_lshl_b32 s40, s40, 2
s_and_b32 s41, s39, 3
s_add_u32 s{S_RB}, s40, s41
s_lshr_b32 s{S_HALF}, s38, 2
s_lshr_b32 s41, s39, 2            ; pl
s_lshl_b32 s40, s{S_HALF}, 3
s_add_u32 s{S_PAIR}, s40, s41
s_lshr_b32 s40, 0xA5, s41
s_and_b32 s{S_LIGHT}, s40, 1
s_lshl_b32 s40, 1, s41
s_sub_u32 s40, s40, 1
s_and_b32 s40, s40, 0xA5
s_bcnt1_i32_b32 s{S_QIDX}, s40
s_mov_b32 s{S_ONES}, 0x3f803f80
s_mov_b32 s{S_CLO}, 0x00003f80
s_mov_b32 s{S_CHI}, 0x3f800000
s_mov_b32 s{S_LOG2E}, 0x3fb8aa3b
s_mov_b32 s66, 0xffffffff
s_mov_b32 s67, 0xff
s_waitcnt lgkmcnt(0)
s_mov_b32 s{S_X}, s48
s_mov_b32 s{S_X+1}, s49
s_mov_b32 s{S_X+2}, 2621440
s_mov_b32 s{S_X+3}, 0x20000
s_mov_b32 s{S_W}, s50
s_mov_b32 s{S_W+1}, s51
s_mov_b32 s{S_W+2}, 2457600
s_mov_b32 s{S_W+3}, 0x20000
s_mov_b32 s{S_WPHI}, s52
s_mov_b32 s{S_WPHI+1}, s53
s_mov_b32 s{S_WPHI+2}, 25600
s_mov_b32 s{S_WPHI+3}, 0x20000
s_mov_b32 s{S_WO}, s54
s_mov_b32 s{S_WO+1}, s55
s_mov_b32 s{S_WO+2}, 819200
s_mov_b32 s{S_WO+3}, 0x20000
s_mov_b32 s{S_WR}, s56
s_mov_b32 s{S_WR+1}, s57
s_mov_b32 s{S_WR+2}, 1280
s_mov_b32 s{S_WR+3}, 0x20000
s_mov_b32 s{S_DBG}, s60
s_mov_b32 s{S_DBG+1}, s61
s_mov_b32 s{S_DBG+2}, 256
s_mov_b32 s{S_DBG+3}, 0x20000
s_mov_b32 s{S_WS}, s62
s_mov_b32 s{S_WS+1}, s63
s_mov_b32 s{S_WS+2}, {WS_BYTES}
s_mov_b32 s{S_WS+3}, 0x20000
""")
    a(f"""
s_cmp_lg_u32 s{S_RB}, 0
s_cbranch_scc1 K1_NOZERO
v_cmp_gt_u32 vcc, 420, v0
s_and_saveexec_b64 s[64:65], vcc
s_cbranch_execz K1_ZERO_DONE
v_mov_b32 v10, 0
v_mov_b32 v11, 0
v_mov_b32 v12, 0
v_mov_b32 v13, 0
v_lshlrev_b32 v14, 4, v0
s_mul_i32 s38, s{S_PAIR}, 6720
buffer_store_dwordx4 v[10:13], v14, s[{S_WS}:{S_WS+3}], s38 offen sc0 sc1
K1_ZERO_DONE:
s_mov_b64 exec, s[64:65]
K1_NOZERO:
""")
    a(f"""
s_cmp_ge_u32 s2, 100
s_cbranch_scc1 K1_NOWOL
s_lshl_b32 s38, s2, 3
s_add_u32 s38, s38, s{S_WAVE}
s_mul_i32 s39, s38, 1639
s_lshr_b32 s39, s39, 16
s_mul_i32 s40, s39, 40
s_sub_u32 s40, s38, s40                ; kappa
s_mul_i32 s41, s40, 205
s_lshr_b32 s41, s41, 10                ; w' = kappa/5
s_mul_i32 s42, s41, 5
s_sub_u32 s42, s40, s42                ; s5
v_and_b32 v10, 31, v{V_LANE}
v_lshrrev_b32 v11, 2, v10
v_and_b32 v11, 1, v11
v_lshlrev_b32 v11, 4, v11
v_lshrrev_b32 v12, 3, v10
v_lshlrev_b32 v12, 2, v12
v_and_b32 v13, 3, v10
v_add3_u32 v11, v11, v12, v13
s_lshl_b32 s43, s39, 5
v_add_u32 v11, s43, v11
v_lshlrev_b32 v11, 1, v11
v_lshrrev_b32 v12, 5, v{V_LANE}
v_mul_u32_u24 v12, 12800, v12
v_add_u32 v11, v11, v12
s_mul_i32 s43, s41, 80                 ; 80 w'
s_lshl_b32 s44, s42, 3                 ; 8 s5
""")
    for j in range(8):
        a(f"""
s_add_u32 s45, s44, {j}
s_mul_i32 s46, s45, 205
s_lshr_b32 s46, s46, 11
s_mul_i32 s46, s46, 10
s_add_u32 s45, s45, s46
s_add_u32 s45, s45, s43
s_mul_i32 s45, s45, 1280
buffer_load_ushort v{228 + j}, v11, s[{S_WO}:{S_WO+3}], s45 offen
""")
    a("K1_NOWOL:")
    a(f"""
s_cmp_ge_u32 s{S_WAVE}, 5
s_cbranch_scc1 K1_MISC_WR
s_mul_i32 s38, s{S_PAIR}, 1600
s_lshl_b32 s39, s{S_HALF}, 4
s_lshl_b32 s40, s{S_QIDX}, 2
s_add_u32 s39, s39, s40
s_mul_i32 s39, s39, 800
s_sub_u32 s39, s39, 1600
v_lshlrev_b32 v10, 4, v0
v_mov_b32 v11, s38
v_mov_b32 v12, s39
v_cmp_gt_u32 vcc, 100, v0
s_nop 1
v_cndmask_b32 v11, v12, v11, vcc
v_add_u32 v10, v10, v11
s_lshl_b32 s38, s{S_WAVE}, 10
s_add_u32 m0, s38, {L_WPHI}
v_cmp_gt_u32 vcc, 300, v0
s_and_saveexec_b64 s[64:65], vcc
buffer_load_dwordx4 v10, s[{S_WPHI}:{S_WPHI+3}], 0 offen lds
s_mov_b64 exec, s[64:65]
s_branch K1_MISC_DONE
K1_MISC_WR:
s_cmp_ge_u32 s{S_WAVE}, 7
s_cbranch_scc1 K1_MISC_ZERO
v_subrev_u32 v11, 320, v0
v_lshlrev_b32 v10, 4, v11
s_sub_u32 s38, s{S_WAVE}, 5
s_lshl_b32 s38, s38, 10
s_add_u32 m0, s38, {L_WR}
v_cmp_gt_u32 vcc, 80, v11
s_and_saveexec_b64 s[64:65], vcc
buffer_load_dwordx4 v10, s[{S_WR}:{S_WR+3}], 0 offen lds
s_mov_b64 exec, s[64:65]
s_branch K1_MISC_DONE
K1_MISC_ZERO:
v_mov_b32 v10, 0
v_mov_b32 v11, 0
v_mov_b32 v12, 0
v_mov_b32 v13, 0
v_lshlrev_b32 v14, 4, v{V_LANE}
v_add_u32 v14, {L_ZERO}, v14
v_cmp_gt_u32 vcc, 56, v{V_LANE}
s_and_saveexec_b64 s[64:65], vcc
ds_write_b128 v14, v[10:13]
s_mov_b64 exec, s[64:65]
K1_MISC_DONE:
""")
    a(f"""
s_lshl_b32 s38, s{S_RB}, 7
s_lshl_b32 s39, s{S_WAVE}, 4
s_add_u32 s38, s38, s39
v_lshrrev_b32 v10, 3, v{V_LANE}
v_add_u32 v10, s38, v10
s_movk_i32 s39, 1280
v_mul_lo_u32 v10, v10, s39
v_and_b32 v11, 7, v{V_LANE}
v_lshlrev_b32 v11, 4, v11
v_add_u32 v{V_XO0}, v10, v11
v_add_u32 v{V_XO1}, 10240, v{V_XO0}
""")
    for i in range(10):
        a(f"buffer_load_dwordx4 v[{XF+8*i}:{XF+8*i+3}], v{V_XO0}, s[{S_X}:{S_X+3}], 0 offen offset:{128*i}")
        a(f"buffer_load_dwordx4 v[{XF+8*i+4}:{XF+8*i+7}], v{V_XO1}, s[{S_X}:{S_X+3}], 0 offen offset:{128*i}")
    a(f"""
; l/10, l%10
v_mul_u32_u24 v10, 26, v{V_LANE}
v_lshrrev_b32 v10, 8, v10            ; l/10 for l<40 (26/256=0.1016)
v_mul_u32_u24 v11, 10, v10
v_sub_u32 v11, v{V_LANE}, v11        ; cir
s_lshl_b32 s38, s{S_WAVE}, 2
v_add_u32 v10, s38, v10              ; row
s_movk_i32 s39, 3840
v_mul_lo_u32 v10, v10, s39
v_lshlrev_b32 v12, 4, v11            ; 16 cir
v_add_u32 v10, v10, v12
; q offset
s_mul_i32 s38, s{S_HALF}, 640
s_mul_i32 s39, s{S_QIDX}, 160
s_add_u32 s38, s38, s39
v_add_u32 v{V_WQO}, s38, v10
s_mul_i32 s38, s{S_PAIR}, 80
s_add_u32 s39, s38, 1280
s_add_u32 s40, s38, 2480
v_mov_b32 v12, s39
v_mov_b32 v13, s40
v_cmp_gt_u32 vcc, 5, v11
s_nop 1
v_cndmask_b32 v12, v13, v12, vcc
v_add_u32 v{V_WKVO}, v10, v12
s_mul_i32 s72, s{S_WAVE}, 640
""")
    for s in range(20):
        emit_wdma(a, V_WKVO, s, L_WKV + 5120*s)
    a(f"s_cmp_eq_u32 s{S_LIGHT}, 0")
    a("s_cbranch_scc1 K1_HEAVY")
    for light in (True, False):
        tag = "L" if light else "H"
        if not light:
            a("K1_HEAVY:")
        else:
            for q in range(7):
                emit_wdma(a, V_WQO, q, wq_slot(q))
        emit_k1_body(a, light, tag)
    a("K1_END:")
    a("s_endpgm")
    return a.text()

def emit_k1_udy(): pass

def emit_k1_body(a, light, tag):
    nq = 7 if light else 0
    a(f"""
s_mul_i32 s39, s{S_WAVE}, 2304
s_add_u32 s39, s39, {L_XST}
v_lshrrev_b32 v10, 3, v{V_LANE}
v_mul_u32_u24 v10, 144, v10
v_and_b32 v11, 7, v{V_LANE}
v_lshlrev_b32 v11, 4, v11
v_add3_u32 v{V_XSW}, v10, v11, s39
v_and_b32 v10, 15, v{V_LANE}
v_mul_u32_u24 v10, 144, v10
v_lshrrev_b32 v11, 4, v{V_LANE}
v_lshlrev_b32 v11, 3, v11
v_add3_u32 v{V_XSR}, v10, v11, s39
v_lshrrev_b32 v10, 2, v{V_LANE}
v_mul_u32_u24 v10, 160, v10
v_and_b32 v11, 3, v{V_LANE}
v_mul_u32_u24 v11, 40, v11
v_add_u32 v{V_TRB}, v10, v11
""")
    for i in range(10):
        a(f"s_waitcnt vmcnt({2*(9-i) + 20 + nq})")
        a(f"ds_write_b128 v{V_XSW}, v[{XF+8*i}:{XF+8*i+3}]")
        a(f"ds_write_b128 v{V_XSW}, v[{XF+8*i+4}:{XF+8*i+7}] offset:1152")
        a("s_waitcnt lgkmcnt(0)")
        a(f"ds_read2_b64 v[{XF+8*i}:{XF+8*i+3}], v{V_XSR} offset0:0 offset1:4")
        a(f"ds_read2_b64 v[{XF+8*i+4}:{XF+8*i+7}], v{V_XSR} offset0:8 offset1:12")
        a("s_waitcnt lgkmcnt(0)")
    S1, S1b, S2, S2b = 36, 37, 38, 39
    for r in (S1, S1b, S2, S2b):
        a(f"v_mov_b32 v{r}, 0")
    for i in range(80):
        a(f"v_dot2_f32_bf16 v{S1 + (i&1)}, v{XF+i}, s{S_ONES}, v{S1 + (i&1)}")
        a(f"v_dot2_f32_bf16 v{S2 + (i&1)}, v{XF+i}, v{XF+i}, v{S2 + (i&1)}")
    a("s_nop 3")
    a(f"v_add_f32 v{S1}, v{S1}, v{S1b}")
    a(f"v_add_f32 v{S2}, v{S2}, v{S2b}")
    for sw in ("v_permlane16_swap_b32", "v_permlane32_swap_b32"):
        a(f"v_mov_b32 v40, v{S1}")
        a(f"v_mov_b32 v41, v{S2}")
        a("s_nop 1")
        a(f"{sw} v{S1}, v40")
        a(f"{sw} v{S2}, v41")
        a("s_nop 1")
        a(f"v_add_f32 v{S1}, v{S1}, v40")
        a(f"v_add_f32 v{S2}, v{S2}, v41")
    NEGM, RS, MB = 42, 43, 44
    a(f"""
v_mul_f32 v{S1}, 0x3acccccd, v{S1}        ; mean (1/640)
v_mul_f32 v{S2}, 0x3acccccd, v{S2}        ; E[x^2]
v_fma_f32 v{S2}, -v{S1}, v{S1}, v{S2}     ; var
v_max_f32 v{S2}, 0, v{S2}
v_cvt_pk_bf16_f32 v40, v{S1}, v{S2}
v_lshlrev_b32 v{MB}, 16, v40              ; m_b
v_and_b32 v41, 0xffff0000, v40            ; v_b
v_add_f32 v41, 0x3727c5ac, v41            ; + 1e-5
v_cvt_pk_bf16_f32 v41, v41, v41
v_and_b32 v41, 0xffff0000, v41
v_sqrt_f32 v41, v41
s_nop 0
v_cvt_pk_bf16_f32 v41, v41, v41
v_and_b32 v41, 0xffff0000, v41            ; s
v_rcp_f32 v{RS}, v41
v_sub_f32 v{NEGM}, 0, v{MB}
s_nop 0
""")
    T = 44 + 4
    for s in range(20):
        x = XF + 4*s
        for j in range(4):
            a(f"v_dot2_f32_bf16 v{T+2*j}, v{x+j}, s{S_CLO}, v{NEGM}")
            a(f"v_dot2_f32_bf16 v{T+2*j+1}, v{x+j}, s{S_CHI}, v{NEGM}")
        a("s_nop 2")
        for j in range(4):
            a(f"v_cvt_pk_bf16_f32 v{T+8+j}, v{T+2*j}, v{T+2*j+1}")
        for j in range(4):
            a(f"v_lshlrev_b32 v{T+2*j}, 16, v{T+8+j}")
            a(f"v_and_b32 v{T+2*j+1}, 0xffff0000, v{T+8+j}")
        for j in range(8):
            a(f"v_mul_f32 v{T+j}, v{T+j}, v{RS}")
        for j in range(4):
            a(f"v_cvt_pk_bf16_f32 v{x+j}, v{T+2*j}, v{T+2*j+1}")
    emit_k1_rest(a, light, tag, T, S1, S1b, MB, RS)
    return a


def emit_k1_rest(a, light, tag, T, S1, S1b, MB, RS):
    after0 = Asm()
    l9 = f"K1_NOR_{tag}"
    after0(f"""
s_cmp_lg_u32 s{S_WAVE}, 0
s_cbranch_scc1 K1_A0_NOFLAG_{tag}
s_cmp_lg_u32 s{S_RB}, 0
s_cbranch_scc1 K1_A0_NOFLAG_{tag}
v_mov_b32 v46, 1
s_lshl_b32 s40, s{S_PAIR}, 2
v_mov_b32 v47, s40
s_mov_b64 exec, 1
buffer_store_dword v46, v47, s[{S_DBG}:{S_DBG+3}], 0 offen sc0 sc1
s_mov_b64 exec, -1
K1_A0_NOFLAG_{tag}:
s_cmp_lg_u32 s{S_PAIR}, 0
s_cbranch_scc1 {l9}
s_lshl_b32 s39, s{S_RB}, 7
s_lshl_b32 s40, s{S_WAVE}, 4
s_add_u32 s41, s39, s40
v_add_u32 v40, s41, v{V_LANE}
v_lshlrev_b32 v41, 3, v40
v_mov_b32 v46, v{MB}
v_mov_b32 v47, v{RS}
s_mov_b64 exec, 0xffff
s_mov_b32 s40, {WS_STATS}
buffer_store_dwordx2 v[46:47], v41, s[{S_WS}:{S_WS+3}], s40 offen
s_mov_b64 exec, -1
v_lshrrev_b32 v41, 4, v{V_LANE}
v_lshlrev_b32 v41, 3, v41
v_add_u32 v41, {L_WR}, v41
v_mov_b32 v{S1}, 0
v_mov_b32 v{S1b}, 0
""")
    for s in range(20):
        after0(f"ds_read2_b64 v[{T}:{T+3}], v41 offset0:{8*s} offset1:{8*s+4}")
        after0("s_waitcnt lgkmcnt(0)")
        for j in range(4):
            after0(f"v_dot2_f32_bf16 v{S1 + (j&1)}, v{XF+4*s+j}, v{T+j}, v{S1 + (j&1)}")
        after0("s_nop 1")
    after0("s_nop 3")
    after0(f"v_add_f32 v{S1}, v{S1}, v{S1b}")
    for sw in ("v_permlane16_swap_b32", "v_permlane32_swap_b32"):
        after0(f"v_mov_b32 v46, v{S1}")
        after0("s_nop 1")
        after0(f"{sw} v{S1}, v46")
        after0("s_nop 1")
        after0(f"v_add_f32 v{S1}, v{S1}, v46")
    after0(f"""
v_cvt_pk_bf16_f32 v46, v{S1}, v{S1}
v_and_b32 v46, 0xffff0000, v46
v_ashrrev_i32 v47, 31, v46
v_or_b32 v47, 0x80000000, v47
v_xor_b32 v46, v46, v47
v_and_b32 v46, 0xffff0000, v46
v_and_b32 v47, 15, v{V_LANE}
v_add_u32 v47, s41, v47               ; token
v_sub_u32 v47, 2047, v47
v_or_b32 v46, v46, v47                ; key
s_nop 1
v_max_u32_dpp v46, v46, v46 row_ror:1 row_mask:0xf bank_mask:0xf
s_nop 1
v_max_u32_dpp v46, v46, v46 row_ror:2 row_mask:0xf bank_mask:0xf
s_nop 1
v_max_u32_dpp v46, v46, v46 row_ror:4 row_mask:0xf bank_mask:0xf
s_nop 1
v_max_u32_dpp v46, v46, v46 row_ror:8 row_mask:0xf bank_mask:0xf
s_lshl_b32 s40, s{S_WAVE}, 2
s_add_u32 s40, s40, {L_MISC}
v_mov_b32 v47, s40
s_mov_b64 exec, 1
ds_write_b32 v47, v46
s_mov_b64 exec, -1
{l9}:
""")
    after1 = Asm()
    after1(f"""
s_cmp_lg_u32 s{S_WAVE}, 0
s_cbranch_scc1 K1_A1_DONE_{tag}
s_cmp_lg_u32 s{S_PAIR}, 0
s_cbranch_scc1 K1_A1_DONE_{tag}
v_mov_b32 v47, {L_MISC}
ds_read_b128 v[48:51], v47
ds_read_b128 v[52:55], v47 offset:16
s_waitcnt lgkmcnt(0)
v_max_u32 v48, v48, v49
v_max_u32 v50, v50, v51
v_max_u32 v52, v52, v53
v_max_u32 v54, v54, v55
v_max_u32 v48, v48, v50
v_max_u32 v52, v52, v54
v_max_u32 v48, v48, v52
s_lshl_b32 s40, s{S_RB}, 2
s_add_u32 s40, s40, {WS_AMAX}
v_mov_b32 v47, 0
s_mov_b64 exec, 1
buffer_store_dword v48, v47, s[{S_WS}:{S_WS+3}], s40 offen
s_mov_b64 exec, -1
K1_A1_DONE_{tag}:
""")
    sub = Asm()
    emit_kloop(sub, [L_WKV + 5120*s for s in range(20)], light, True)
    for ln in sub.lines:
        if ln.strip() == "K1_AFTER_BAR0":
            a.lines += after0.lines
        elif ln.strip() == "K1_AFTER_BAR1":
            a.lines += after1.lines
        else:
            a.lines.append(ln)
    PB = 36
    a("s_nop 7")
    a("s_nop 1")
    for t in range(5):
        a(f"v_cvt_pk_bf16_f32 v{PB+2*t}, v{ACC+4*t}, v{ACC+4*t+1}")
        a(f"v_cvt_pk_bf16_f32 v{PB+2*t+1}, v{ACC+4*t+2}, v{ACC+4*t+3}")
    a(f"v_mov_b32 v{PB+10}, 0")
    a(f"v_mov_b32 v{PB+11}, 0")
    a(f"""
s_mul_i32 s39, s{S_WAVE}, {16*EXP}
s_add_u32 s39, s39, {L_EX}
v_and_b32 v10, 15, v{V_LANE}
v_mul_u32_u24 v10, {EXP}, v10
v_add_u32 v10, s39, v10
v_lshrrev_b32 v11, 4, v{V_LANE}       ; g
v_mul_u32_u24 v12, 40, v11
v_add_u32 v12, v12, v10
v_add_u32 v12, 80, v12
v_mul_u32_u24 v13, 80, v11
v_add_u32 v13, v13, v10
s_waitcnt lgkmcnt(0)
s_barrier
s_mov_b32 exec_lo, 0
""")
    for t in range(5):
        a(f"ds_write_b64 v12, v[{PB+2*t}:{PB+2*t+1}] offset:{8*t}")
    a(f"""
v_mov_b32 v14, 0x00003f80
v_mov_b32 v15, 0
ds_write_b64 v10, v[14:15] offset:240
s_mov_b64 exec, -1
""")
    a(f"""
v_and_b32 v14, 3, v{V_LANE}           ; c
v_bfe_u32 v15, v{V_LANE}, 2, 2        ; r
v_mul_u32_u24 v15, 40, v15
v_mul_u32_u24 v9, 800, v11
v_add_u32 v15, v15, v9
v_add_u32 v15, {L_WPHI}, v15
v_mov_b32 v9, {L_ZERO}
v_cmp_eq_u32 vcc, v14, v11
v_cmp_gt_u32 s[64:65], 2, v11
s_nop 1
s_and_b64 vcc, vcc, s[64:65]
s_nop 1
v_cndmask_b32 v15, v9, v15, vcc
""")
    emit_project(a, PB, 15, WF)
    emit_softmax(a, XF_P, OUTR, TMPR)
    a("s_mov_b32 exec_hi, 0")
    for c in range(5):
        a(f"ds_write_b128 v13, v[{OUTR+4*c}:{OUTR+4*c+3}] offset:{16*c}")
    a("s_mov_b64 exec, -1")
    a("s_waitcnt lgkmcnt(0)")
    a("s_barrier")
    a(f"""
s_cmp_ge_u32 s{S_WAVE}, 4
s_cbranch_scc1 K1_KV_DONE_{tag}
s_lshr_b32 s40, s{S_WAVE}, 1          ; hh
s_and_b32 s41, s{S_WAVE}, 1           ; V
v_lshrrev_b32 v10, 2, v{V_LANE}
v_mul_u32_u24 v10, {EXP}, v10
v_add_u32 v10, {L_EX}, v10
v_and_b32 v11, 3, v{V_LANE}
v_lshlrev_b32 v12, 3, v11             ; 8c
s_mul_i32 s42, s40, 80
v_add3_u32 v13, v10, v12, s42
s_mul_i32 s42, s40, 40
s_add_u32 s42, s42, 160
v_add_u32 v14, s42, v12               ; V=0 piece
s_add_u32 s43, s42, 32
v_mov_b32 v15, 240
v_mov_b32 v9, s43
v_cmp_eq_u32 vcc, 0, v11
s_nop 1
v_cndmask_b32 v15, v15, v9, vcc       ; V=1 piece
s_cmp_eq_u32 s41, 0
s_cselect_b64 vcc, -1, 0
s_nop 1
v_cndmask_b32 v14, v15, v14, vcc
v_add_u32 v14, v14, v10               ; A addr
""")
    KA = 48
    for ks in range(4):
        o = ks * 32 * EXP
        a(f"ds_read_b64_tr_b16 v[{KA}:{KA+1}], v14 offset:{o}")
        a(f"ds_read_b64_tr_b16 v[{KA+2}:{KA+3}], v14 offset:{o + 16*EXP}")
        for Tt in range(3):
            a(f"ds_read_b64_tr_b16 v[{KA+4+4*Tt}:{KA+5+4*Tt}], v13 offset:{o + 32*Tt}")
            a(f"ds_read_b64_tr_b16 v[{KA+6+4*Tt}:{KA+7+4*Tt}], v13 offset:{o + 16*EXP + 32*Tt}")
        a("s_waitcnt lgkmcnt(0)")
        for Tt in range(3):
            c = f"v[{ACC+4*Tt}:{ACC+4*Tt+3}]" if ks > 0 else "0"
            a(f"v_mfma_f32_16x16x32_bf16 v[{ACC+4*Tt}:{ACC+4*Tt+3}], v[{KA}:{KA+3}], v[{KA+4+4*Tt}:{KA+7+4*Tt}], {c}")
    a(f"""
s_lshl_b32 s42, s{S_PAIR}, 2
v_mov_b32 v10, s42
K1_POLL_{tag}:
buffer_load_dword v11, v10, s[{S_DBG}:{S_DBG+3}], 0 offen sc0 sc1
s_waitcnt vmcnt(0)
s_nop 0
v_readfirstlane_b32 s43, v11
s_nop 3
s_cmp_lg_u32 s43, 0
s_cbranch_scc1 K1_POLLED_{tag}
s_sleep 2
s_branch K1_POLL_{tag}
K1_POLLED_{tag}:
v_lshrrev_b32 v10, 4, v{V_LANE}
v_mul_u32_u24 v10, 640, v10
v_and_b32 v11, 15, v{V_LANE}
v_lshlrev_b32 v11, 2, v11
v_add_u32 v10, v10, v11
s_lshl_b32 s42, s{S_PAIR}, 1
s_add_u32 s42, s42, s40
s_mul_i32 s42, s42, 3360
s_mul_i32 s43, s41, 2560
s_add_u32 s42, s42, s43
s_cmp_eq_u32 s41, 0
s_cselect_b32 s44, -1, -1
s_cselect_b32 s45, -1, 0
s_cselect_b32 s46, -1, 0xffff
s_cselect_b32 s47, -1, 0
s_mov_b32 s64, 0x00ff00ff
s_mov_b32 s65, 0x00ff00ff
""")
    for Tt in range(3):
        for i in range(4):
            lo, hi = ("s44", "s45") if i == 0 else ("s46", "s47")
            if Tt < 2:
                a(f"s_mov_b32 exec_lo, {lo}")
                a(f"s_mov_b32 exec_hi, {hi}")
            else:
                a(f"s_and_b32 exec_lo, {lo}, s64")
                a(f"s_and_b32 exec_hi, {hi}, s65")
            a(f"buffer_atomic_add_f32 v{ACC+4*Tt+i}, v10, s[{S_WS}:{S_WS+3}], s42 offen offset:{160*i + 64*Tt}")
    a("s_mov_b64 exec, -1")
    a(f"K1_KV_DONE_{tag}:")
    if light:
        a(f"""
s_cmp_ge_u32 s{S_WAVE}, 4
s_cbranch_scc1 K1_P2_W0
s_waitcnt vmcnt(12)
s_branch K1_P2_W1
K1_P2_W0:
s_waitcnt vmcnt(0)
K1_P2_W1:
s_barrier
""")
        emit_kloop(a, [wq_slot(s) for s in range(20)], True, False)
        a("s_nop 7")
        a("s_nop 1")
        for t in range(5):
            a(f"v_cvt_pk_bf16_f32 v{PB+2*t}, v{ACC+4*t}, v{ACC+4*t+1}")
            a(f"v_cvt_pk_bf16_f32 v{PB+2*t+1}, v{ACC+4*t+2}, v{ACC+4*t+3}")
        a(f"v_mov_b32 v{PB+10}, 0")
        a(f"v_mov_b32 v{PB+11}, 0")
        a(f"""
v_lshrrev_b32 v11, 4, v{V_LANE}       ; g
v_and_b32 v14, 3, v{V_LANE}           ; c
v_bfe_u32 v15, v{V_LANE}, 2, 2        ; r
v_mul_u32_u24 v15, 40, v15
v_mul_u32_u24 v9, 800, v11
v_add_u32 v15, v15, v9
v_add_u32 v15, {L_WPHI + 1600}, v15
v_mov_b32 v9, {L_ZERO}
v_cmp_eq_u32 vcc, v14, v11
s_nop 1
v_cndmask_b32 v15, v9, v15, vcc
""")
        emit_project(a, PB, 15, WF)
        emit_softmax(a, XF_P, OUTR, TMPR)
        a(f"""
s_lshl_b32 s39, s{S_RB}, 3
s_add_u32 s39, s39, s{S_WAVE}
s_lshl_b32 s39, s39, 5
s_lshl_b32 s40, s{S_HALF}, 4
s_add_u32 s39, s39, s40
s_lshl_b32 s40, s{S_QIDX}, 2
s_add_u32 s39, s39, s40
s_mul_i32 s39, s39, 1280
s_add_u32 s39, s39, {WS_PQ}
v_lshrrev_b32 v11, 4, v{V_LANE}
v_mul_u32_u24 v11, 1280, v11
v_and_b32 v10, 15, v{V_LANE}
v_lshlrev_b32 v10, 4, v10
v_add_u32 v10, v10, v11
""")
        for c in range(5):
            a(f"buffer_store_dwordx4 v[{OUTR+4*c}:{OUTR+4*c+3}], v10, s[{S_WS}:{S_WS+3}], s39 offen offset:{256*c}")
    a(f"""
s_cmp_ge_u32 s2, 100
s_cbranch_scc1 K1_END
s_lshl_b32 s38, s2, 3
s_add_u32 s38, s38, s{S_WAVE}
s_lshl_b32 s38, s38, 10
s_add_u32 s38, s38, {WS_WOP}
v_lshlrev_b32 v10, 4, v{V_LANE}
v_lshl_or_b32 v{WOR}, v229, 16, v228
v_lshl_or_b32 v{WOR+1}, v231, 16, v230
v_lshl_or_b32 v{WOR+2}, v233, 16, v232
v_lshl_or_b32 v{WOR+3}, v235, 16, v234
buffer_store_dwordx4 v[{WOR}:{WOR+3}], v10, s[{S_WS}:{S_WS+3}], s38 offen
s_branch K1_END
""")

XF_P = 188
OUTR = 208
TMPR = 144
```

```python
from common import *
K2_GRID = 208
K2_LDS = 114688
K2_VGPR = 256
NAUX = 48
S_X, S_WS, S_DBG, S_OUT, S_G, S_U, S_D = 4, 8, 12, 16, 20, 24, 28
S_WAVE, S_RBK, S_CB, S_IDX, S_KEY = 32, 33, 34, 35, 36
V_LANE = 1
KVA = 16
PQB = 64
KVP = 112
DAC = 124
OPK = 156
WOF = 166
L_OF = 0
L_RED = 81920

def gen_k2():
    a = Asm()
    a.lines.append(kstart("k2_kernel"))
    a(f"""
s_cmp_ge_u32 s2, {K2_GRID}
s_cbranch_scc1 K2_END
s_load_dwordx2 s[48:49], s[0:1], 0
s_load_dwordx4 s[52:55], s[0:1], 48
s_load_dwordx4 s[56:59], s[0:1], 64
s_load_dwordx4 s[60:63], s[0:1], 80
v_and_b32 v{V_LANE}, 63, v0
v_lshrrev_b32 v10, 6, v0
s_nop 0
v_readfirstlane_b32 s{S_WAVE}, v10
s_waitcnt lgkmcnt(0)
s_mov_b32 s{S_X}, s48
s_mov_b32 s{S_X+1}, s49
s_mov_b32 s{S_X+2}, 2621440
s_mov_b32 s{S_X+3}, 0x20000
s_mov_b32 s{S_G}, s52
s_mov_b32 s{S_G+1}, s53
s_mov_b32 s{S_G+2}, 1966080
s_mov_b32 s{S_G+3}, 0x20000
s_mov_b32 s{S_U}, s54
s_mov_b32 s{S_U+1}, s55
s_mov_b32 s{S_U+2}, 1966080
s_mov_b32 s{S_U+3}, 0x20000
s_mov_b32 s{S_D}, s56
s_mov_b32 s{S_D+1}, s57
s_mov_b32 s{S_D+2}, 1966080
s_mov_b32 s{S_D+3}, 0x20000
s_mov_b32 s{S_OUT}, s58
s_mov_b32 s{S_OUT+1}, s59
s_mov_b32 s{S_OUT+2}, 2621440
s_mov_b32 s{S_OUT+3}, 0x20000
s_mov_b32 s{S_DBG}, s60
s_mov_b32 s{S_DBG+1}, s61
s_mov_b32 s{S_DBG+2}, 256
s_mov_b32 s{S_DBG+3}, 0x20000
s_mov_b32 s{S_WS}, s62
s_mov_b32 s{S_WS+1}, s63
s_mov_b32 s{S_WS+2}, {WS_BYTES}
s_mov_b32 s{S_WS+3}, 0x20000
s_add_u32 s64, s62, {WS_AMAX}
s_addc_u32 s65, s63, 0
s_load_dwordx16 s[80:95], s[64:65], 0
s_cmp_lt_u32 s2, {NAUX}
s_cbranch_scc1 K2_AUX
""")
    gen_main(a)
    a("K2_AUX:")
    gen_aux(a)
    a("K2_END:")
    a("s_endpgm")
    return a.text()

def emit_idx(a):
    a("s_waitcnt lgkmcnt(0)")
    a("s_max_u32 s80, s80, s81")
    for i in range(82, 96):
        a(f"s_max_u32 s80, s80, s{i}")
    a(f"s_mov_b32 s{S_KEY}, s80")
    a("s_and_b32 s81, s80, 0x7ff")
    a(f"s_sub_u32 s{S_IDX}, 2047, s81")

def gen_main(a):
    a(f"""
s_sub_u32 s38, s2, {NAUX}
s_and_b32 s39, s38, 7           ; xcd
s_lshr_b32 s40, s38, 3          ; j 0..19
s_and_b32 s41, s40, 3
s_lshl_b32 s39, s39, 2
s_add_u32 s{S_RBK}, s39, s41
s_lshr_b32 s{S_CB}, s40, 2
; ---- addresses ----
v_and_b32 v10, 31, v{V_LANE}
v_lshrrev_b32 v11, 3, v10
v_lshlrev_b32 v11, 2, v11
v_and_b32 v12, 3, v10
v_add_u32 v11, v11, v12          ; q'
v_bfe_u32 v12, v10, 2, 1
v_mul_u32_u24 v12, 10, v12
v_add_u32 v12, v12, v11
v_mov_b32 v13, 20
v_cmp_gt_u32 vcc, 10, v11
s_nop 1
v_cndmask_b32 v12, v13, v12, vcc ; r
v_mul_u32_u24 v12, 160, v12
v_lshrrev_b32 v13, 5, v{V_LANE}  ; hf
v_lshlrev_b32 v14, 5, v13
v_add_u32 v2, v12, v14
v_mov_b32 v3, v12
v_bfe_u32 v11, v10, 4, 1
v_mul_u32_u24 v11, 40960, v11
v_lshlrev_b32 v14, 8, v13
v_and_b32 v15, 15, v10
v_lshlrev_b32 v15, 4, v15
v_add3_u32 v4, v11, v14, v15
s_lshl_b32 s42, s{S_WAVE}, 2              ; head0 = 4w
s_mul_i32 s43, s42, 3360
s_lshl_b32 s44, s{S_RBK}, 2               ; tt0
s_lshl_b32 s44, s44, 5
s_add_u32 s44, s44, s42
s_mul_i32 s44, s44, 1280
s_add_u32 s44, s44, {WS_PQ}
s_and_b32 s45, s{S_WAVE}, 3               ; nu
s_lshr_b32 s46, s{S_WAVE}, 2              ; eta
s_lshl_b32 s47, s{S_CB}, 2
s_add_u32 s47, s47, s45
s_mul_i32 s47, s47, 40
s_mul_i32 s66, s46, 20
s_add_u32 s47, s47, s66
s_lshl_b32 s47, s47, 10
s_add_u32 s47, s47, {WS_WOP}
v_lshlrev_b32 v5, 4, v{V_LANE}
""")
    def load_head(h, st):
        kb = KVA + 24*st; pb = PQB + 24*st
        a(f"s_add_u32 s66, s43, {3360*h}")
        for s in range(3):
            vo = 2 if s < 2 else 3
            a(f"buffer_load_dwordx4 v[{kb+8*s}:{kb+8*s+3}], v{vo}, s[{S_WS}:{S_WS+3}], s66 offen offset:{64*s}")
            a(f"buffer_load_dwordx4 v[{kb+8*s+4}:{kb+8*s+7}], v{vo}, s[{S_WS}:{S_WS+3}], s66 offen offset:{64*s+16}")
        a(f"s_add_u32 s66, s44, {1280*h}")
        a(f"s_add_u32 s67, s66, {2*40960}")
        for tau in range(2):
            sb = "s66" if tau == 0 else "s67"
            for s in range(3):
                r = pb + 12*tau + 4*s
                if s == 2:
                    for j in range(4):
                        a(f"v_mov_b32 v{r+j}, 0")
                    a("s_mov_b32 exec_hi, 0")
                a(f"buffer_load_dwordx4 v[{r}:{r+3}], v4, s[{S_WS}:{S_WS+3}], {sb} offen offset:{512*s}")
                if s == 2:
                    a("s_mov_b32 exec_hi, -1")
    load_head(0, 0)
    load_head(1, 1)
    for k in range(20):
        if k % 4 == 0 and k > 0:
            a(f"s_add_u32 s47, s47, 4096")
        a(f"buffer_load_dwordx4 v[{WOF+4*k}:{WOF+4*k+3}], v5, s[{S_WS}:{S_WS+3}], s47 offen offset:{1024*(k%4)}")
    a(f"""
s_mul_i32 s66, s{S_WAVE}, 10240
v_lshlrev_b32 v6, 4, v{V_LANE}
v_add_u32 v6, s66, v6
s_mov_b32 s68, 0x358637bd      ; 1e-6
""")
    waits = [32, 32, 12, 0]
    for h in range(4):
        st = h & 1
        kb = KVA + 24*st; pb = PQB + 24*st
        a(f"s_waitcnt vmcnt({waits[h]})")
        for i in range(12):
            a(f"v_cvt_pk_bf16_f32 v{KVP+i}, v{kb+2*i}, v{kb+2*i+1}")
        a("s_nop 1")
        for tau in range(2):
            for s in range(3):
                c = f"v[{DAC+16*tau}:{DAC+16*tau+15}]" if s > 0 else "0"
                a(f"v_mfma_f32_32x32x16_bf16 v[{DAC+16*tau}:{DAC+16*tau+15}], v[{KVP+4*s}:{KVP+4*s+3}], v[{pb+12*tau+4*s}:{pb+12*tau+4*s+3}], {c}")
        if h + 2 < 4:
            load_head(h + 2, st)
        a("s_nop 7")
        a("s_nop 3")
        for tau in range(2):
            d = DAC + 16*tau
            a(f"v_cvt_pk_bf16_f32 v10, v{d+10}, v{d+10}")
            a(f"v_and_b32 v10, 0xffff0000, v10")
            a(f"v_add_f32 v10, s68, v10")
            a(f"v_cvt_pk_bf16_f32 v10, v10, v10")
            a(f"v_and_b32 v10, 0xffff0000, v10")
            a(f"v_rcp_f32 v10, v10")
            for i in range(5):
                a(f"v_cvt_pk_bf16_f32 v{OPK+i}, v{d+2*i}, v{d+2*i+1}")
            for i in range(5):
                a(f"v_lshlrev_b32 v{d+2*i}, 16, v{OPK+i}")
                a(f"v_and_b32 v{d+2*i+1}, 0xffff0000, v{OPK+i}")
            for i in range(10):
                a(f"v_mul_f32 v{d+i}, v{d+i}, v10")
            for i in range(5):
                a(f"v_cvt_pk_bf16_f32 v{OPK+5+i}, v{d+2*i}, v{d+2*i+1}")
            for i in range(5):
                rho = 5*h + i
                a(f"ds_write_b32 v6, v{OPK+5+i} offset:{((rho//4)*2+tau)*1024 + 4*(rho%4)}")
    XR, ST = 16, 24
    a(f"""
s_lshl_b32 s66, s{S_RBK}, 6
s_lshl_b32 s67, s46, 5
s_add_u32 s66, s66, s67
v_and_b32 v10, 31, v{V_LANE}
v_add_u32 v10, s66, v10                ; token
v_lshlrev_b32 v11, 3, v10
s_mov_b32 s67, {WS_STATS}
buffer_load_dwordx2 v[{ST}:{ST+1}], v11, s[{S_WS}:{S_WS+3}], s67 offen
s_movk_i32 s67, 1280
v_mul_lo_u32 v7, v10, s67
s_lshl_b32 s67, s{S_CB}, 8
s_lshl_b32 s69, s45, 6
s_add_u32 s67, s67, s69
v_lshrrev_b32 v11, 5, v{V_LANE}
v_lshlrev_b32 v11, 5, v11
v_add3_u32 v7, v7, v11, s67
buffer_load_dwordx4 v[{XR}:{XR+3}], v7, s[{S_X}:{S_X+3}], 0 offen
buffer_load_dwordx4 v[{XR+4}:{XR+7}], v7, s[{S_X}:{S_X+3}], 0 offen offset:16
v_mov_b32 v8, v10
s_waitcnt lgkmcnt(0)
s_barrier
s_mul_i32 s66, s46, 40960
v_lshlrev_b32 v6, 4, v{V_LANE}
v_add_u32 v6, s66, v6
""")
    BF = 32
    def rd(k, buf):
        a(f"ds_read_b128 v[{BF+8*buf}:{BF+8*buf+3}], v6 offset:{2048*k}")
        a(f"ds_read_b128 v[{BF+8*buf+4}:{BF+8*buf+7}], v6 offset:{2048*k+1024}")
    rd(0, 0)
    for k in range(20):
        if k < 19:
            rd(k+1, (k+1)&1)
            a("s_waitcnt lgkmcnt(2)")
        else:
            a("s_waitcnt lgkmcnt(0)")
        b = BF + 8*(k&1)
        for tau in range(2):
            c = f"v[{DAC+16*tau}:{DAC+16*tau+15}]" if k > 0 else "0"
            a(f"v_mfma_f32_32x32x16_bf16 v[{DAC+16*tau}:{DAC+16*tau+15}], v[{WOF+4*k}:{WOF+4*k+3}], v[{b+4*tau}:{b+4*tau+3}], {c}")
    a(f"""
s_nop 7
s_nop 3
s_lshl_b32 s66, s{S_WAVE}, 12
s_add_u32 s66, s66, {L_RED}
v_lshlrev_b32 v6, 4, v{V_LANE}
v_add_u32 v6, s66, v6
s_xor_b32 s67, s{S_WAVE}, 4
s_lshl_b32 s67, s67, 12
s_add_u32 s67, s67, {L_RED}
v_lshlrev_b32 v9, 4, v{V_LANE}
v_add_u32 v9, s67, v9
s_cmp_eq_u32 s46, 0
s_cbranch_scc0 K2_ETA1
""")
    for q in range(4):
        a(f"ds_write_b128 v6, v[{DAC+16+4*q}:{DAC+16+4*q+3}] offset:{1024*q}")
    a("s_branch K2_ETA_J")
    a("K2_ETA1:")
    for q in range(4):
        a(f"ds_write_b128 v6, v[{DAC+4*q}:{DAC+4*q+3}] offset:{1024*q}")
    for q in range(16):
        a(f"v_mov_b32 v{DAC+q}, v{DAC+16+q}")
    a("K2_ETA_J:")
    a("s_waitcnt lgkmcnt(0)")
    a("s_barrier")
    RD = 48
    for q in range(4):
        a(f"ds_read_b128 v[{RD+4*q}:{RD+4*q+3}], v9 offset:{1024*q}")
    emit_idx(a)
    for q in range(16):
        a(f"v_add_f32 v{DAC+q}, v{DAC+q}, v{RD+q}")
    Y = 64
    for q in range(16):
        a(f"v_mov_b32 v{Y+q}, 0")
    a(f"""
s_lshl_b32 s66, s{S_RBK}, 6
s_lshl_b32 s67, s46, 5
s_add_u32 s66, s66, s67
s_sub_u32 s67, s{S_IDX}, s66
s_cmp_ge_u32 s67, 32
s_cbranch_scc1 K2_NOOWN
v_mov_b32 v10, 0
K2_POLL:
buffer_load_dword v11, v10, s[{S_DBG}:{S_DBG+3}], 0 offen sc0 sc1
s_waitcnt vmcnt(0)
s_nop 0
v_readfirstlane_b32 s69, v11
s_nop 3
s_cmp_ge_u32 s69, {NAUX}
s_cbranch_scc1 K2_POLLED
s_sleep 2
s_branch K2_POLL
K2_POLLED:
v_and_b32 v10, 31, v{V_LANE}
v_lshlrev_b32 v10, 2, v10
v_lshrrev_b32 v11, 5, v{V_LANE}
v_mul_u32_u24 v11, 61440, v11
v_add_u32 v10, v10, v11
s_lshl_b32 s69, s{S_CB}, 9
s_lshl_b32 s70, s45, 7
s_add_u32 s69, s69, s70
s_add_u32 s69, s69, {WS_YPART}
""")
    for p in range(24):
        a(f"s_add_u32 s70, s69, {2560*p}")
        a(f"buffer_load_dword v{80+p}, v10, s[{S_WS}:{S_WS+3}], s70 offen sc0 sc1")
    a("s_waitcnt vmcnt(0)")
    for p in range(1, 24):
        a(f"v_add_f32 v80, v80, v{80+p}")
    a(f"""
v_mov_b32 v81, v80
s_nop 1
v_permlane32_swap_b32 v80, v81
s_nop 1
v_add_f32 v80, v80, v81
v_cvt_pk_bf16_f32 v80, v80, v80
v_and_b32 v80, 0xffff0000, v80
; r_sel
s_and_b32 s69, s{S_KEY}, 0xffff0000
s_xor_b32 s70, s69, 0x80000000
s_not_b32 s71, s69
s_and_b32 s71, s71, 0xffff0000
s_cmp_lt_i32 s69, 0
s_cselect_b32 s69, s70, s71         ; r bits
v_mov_b32 v81, s69
v_mul_f32 v81, 0xbfb8aa3b, v81
v_exp_f32 v81, v81
s_nop 0
v_add_f32 v81, 1.0, v81
v_rcp_f32 v81, v81
s_nop 0
v_cvt_pk_bf16_f32 v81, v81, v81
v_and_b32 v81, 0xffff0000, v81
v_mul_f32 v80, v80, v81
v_cvt_pk_bf16_f32 v80, v80, v80
v_and_b32 v80, 0xffff0000, v80
s_lshl_b32 s69, s{S_WAVE}, 8
v_and_b32 v10, 31, v{V_LANE}
v_lshlrev_b32 v10, 2, v10
v_add_u32 v10, s69, v10
ds_write_b32 v10, v80
v_lshrrev_b32 v11, 5, v{V_LANE}
v_lshlrev_b32 v11, 6, v11
v_add_u32 v11, s69, v11
s_waitcnt lgkmcnt(0)
ds_read_b128 v[{Y}:{Y+3}], v11
ds_read_b128 v[{Y+4}:{Y+7}], v11 offset:16
ds_read_b128 v[{Y+8}:{Y+11}], v11 offset:32
ds_read_b128 v[{Y+12}:{Y+15}], v11 offset:48
s_waitcnt lgkmcnt(0)
v_cmp_eq_u32 vcc, s{S_IDX}, v8
s_nop 1
""")
    for q in range(16):
        a(f"v_cndmask_b32 v{Y+q}, 0, v{Y+q}, vcc")
    a("K2_NOOWN:")
    a("s_waitcnt vmcnt(0)")
    T = 80
    a(f"v_sub_f32 v{T+40}, 0, v{ST}")
    for q in range(8):
        xr = XR + q
        x0, x1 = T, T+1
        a(f"v_lshlrev_b32 v{x0}, 16, v{xr}")
        a(f"v_and_b32 v{x1}, 0xffff0000, v{xr}")
        a(f"v_cvt_pk_bf16_f32 v{T+2}, v{DAC+2*q}, v{DAC+2*q+1}")
        a(f"v_lshlrev_b32 v{T+3}, 16, v{T+2}")
        a(f"v_and_b32 v{T+4}, 0xffff0000, v{T+2}")
        a(f"v_add_f32 v{T+3}, v{x0}, v{T+3}")
        a(f"v_add_f32 v{T+4}, v{x1}, v{T+4}")
        a(f"v_cvt_pk_bf16_f32 v{T+2}, v{T+3}, v{T+4}")
        a(f"v_lshlrev_b32 v{T+3}, 16, v{T+2}")
        a(f"v_and_b32 v{T+4}, 0xffff0000, v{T+2}")
        a(f"v_add_f32 v{x0}, v{x0}, v{T+40}")
        a(f"v_add_f32 v{x1}, v{x1}, v{T+40}")
        a(f"v_cvt_pk_bf16_f32 v{T+5}, v{x0}, v{x1}")
        a(f"v_lshlrev_b32 v{x0}, 16, v{T+5}")
        a(f"v_and_b32 v{x1}, 0xffff0000, v{T+5}")
        a(f"v_mul_f32 v{x0}, v{x0}, v{ST+1}")
        a(f"v_mul_f32 v{x1}, v{x1}, v{ST+1}")
        a(f"v_cvt_pk_bf16_f32 v{T+5}, v{x0}, v{x1}")
        a(f"v_lshlrev_b32 v{x0}, 16, v{T+5}")
        a(f"v_and_b32 v{x1}, 0xffff0000, v{T+5}")
        a(f"v_add_f32 v{x0}, v{x0}, v{Y+2*q}")
        a(f"v_add_f32 v{x1}, v{x1}, v{Y+2*q+1}")
        a(f"v_cvt_pk_bf16_f32 v{T+5}, v{x0}, v{x1}")
        a(f"v_lshlrev_b32 v{x0}, 16, v{T+5}")
        a(f"v_and_b32 v{x1}, 0xffff0000, v{T+5}")
        a(f"v_add_f32 v{x0}, v{x0}, v{T+3}")
        a(f"v_add_f32 v{x1}, v{x1}, v{T+4}")
        a(f"v_cvt_pk_bf16_f32 v{T+8+q}, v{x0}, v{x1}")
    a(f"buffer_store_dwordx4 v[{T+8}:{T+11}], v7, s[{S_OUT}:{S_OUT+3}], 0 offen")
    a(f"buffer_store_dwordx4 v[{T+12}:{T+15}], v7, s[{S_OUT}:{S_OUT+3}], 0 offen offset:16")
    a("s_branch K2_END")

def gen_aux(a):
    GW, UW, DW = 16, 36, 56
    L_XN, L_P, L_H, L_Y = 0, 4096, 8192, 12288
    a(f"""
v_lshrrev_b32 v10, 2, v0
s_movk_i32 s38, 3072
v_mul_lo_u32 v11, v10, s38
v_and_b32 v12, 3, v0
v_lshlrev_b32 v12, 4, v12
s_lshl_b32 s39, s2, 6
v_add3_u32 v2, v11, v12, s39
""")
    for i in range(5):
        a(f"s_mov_b32 s40, {i*128*3072}")
        a(f"buffer_load_dwordx4 v[{GW+4*i}:{GW+4*i+3}], v2, s[{S_G}:{S_G+3}], s40 offen")
        a(f"buffer_load_dwordx4 v[{UW+4*i}:{UW+4*i+3}], v2, s[{S_U}:{S_U+3}], s40 offen")
    a(f"""
; down: t<320: chunk = t%80 ; rgd = t/80 ; rows 32a + 8 rgd + i
v_mul_u32_u24 v11, 205, v0
v_lshrrev_b32 v11, 14, v11          ; t/80 (205/16384=0.012512) 
v_mul_u32_u24 v12, 80, v11
v_sub_u32 v12, v0, v12              ; chunk
v_lshlrev_b32 v13, 3, v11
s_lshl_b32 s39, s2, 5
v_add_u32 v13, s39, v13             ; row0
s_movk_i32 s38, 1280
v_mul_lo_u32 v13, v13, s38
v_lshlrev_b32 v14, 4, v12
v_add_u32 v3, v13, v14
v_mov_b32 v4, v11                   ; rgd
v_mov_b32 v5, v12                   ; chunk
s_cmp_ge_u32 s{S_WAVE}, 5
s_cbranch_scc1 K2A_NODL
""")
    for i in range(8):
        a(f"buffer_load_dwordx4 v[{DW+4*i}:{DW+4*i+3}], v3, s[{S_D}:{S_D+3}], 0 offen offset:{1280*(i%3)}" if False else
          f"s_mov_b32 s40, {1280*i}\nbuffer_load_dwordx4 v[{DW+4*i}:{DW+4*i+3}], v3, s[{S_D}:{S_D+3}], s40 offen")
    a("K2A_NODL:")
    emit_idx(a)
    a(f"""
s_cmp_ge_u32 s{S_WAVE}, 2
s_cbranch_scc1 K2A_NOX
s_mul_i32 s38, s{S_IDX}, 1280
v_lshlrev_b32 v10, 4, v0
s_lshl_b32 s39, s{S_IDX}, 3
s_add_u32 s39, s39, {WS_STATS}
v_mov_b32 v11, 0
buffer_load_dwordx4 v[96:99], v10, s[{S_X}:{S_X+3}], s38 offen
buffer_load_dwordx2 v[100:101], v11, s[{S_WS}:{S_WS+3}], s39 offen
s_waitcnt vmcnt(0)
v_sub_f32 v102, 0, v100
""")
    for q in range(4):
        a(f"v_lshlrev_b32 v{104+2*q}, 16, v{96+q}")
        a(f"v_and_b32 v{105+2*q}, 0xffff0000, v{96+q}")
    for q in range(8):
        a(f"v_add_f32 v{104+q}, v{104+q}, v102")
    for q in range(4):
        a(f"v_cvt_pk_bf16_f32 v{96+q}, v{104+2*q}, v{105+2*q}")
    for q in range(4):
        a(f"v_lshlrev_b32 v{104+2*q}, 16, v{96+q}")
        a(f"v_and_b32 v{105+2*q}, 0xffff0000, v{96+q}")
    for q in range(8):
        a(f"v_mul_f32 v{104+q}, v{104+q}, v101")
    for q in range(4):
        a(f"v_cvt_pk_bf16_f32 v{96+q}, v{104+2*q}, v{105+2*q}")
    for q in range(4):
        a(f"v_lshlrev_b32 v{104+2*q}, 16, v{96+q}")
        a(f"v_and_b32 v{105+2*q}, 0xffff0000, v{96+q}")
    a(f"""
v_lshlrev_b32 v10, 5, v0
v_cmp_gt_u32 vcc, 80, v0
s_and_saveexec_b64 s[64:65], vcc
ds_write_b128 v10, v[104:107] offset:{L_XN}
ds_write_b128 v10, v[108:111] offset:{L_XN+16}
s_mov_b64 exec, s[64:65]
K2A_NOX:
s_waitcnt vmcnt(0) lgkmcnt(0)
s_barrier
v_lshrrev_b32 v10, 2, v0
v_lshlrev_b32 v10, 2, v10          ; rg*4
""")
    for i in range(5):
        a(f"ds_read_b32 v{96+i}, v10 offset:{L_XN + 512*i}")
    AG, AU = 104, 112
    for q in range(16):
        a(f"v_mov_b32 v{AG+q}, 0")
    a("s_waitcnt lgkmcnt(0)")
    for i in range(5):
        for (W, A) in ((GW, AG), (UW, AU)):
            for q in range(4):
                a(f"v_lshlrev_b32 v120, 16, v{W+4*i+q}")
                a(f"v_and_b32 v121, 0xffff0000, v{W+4*i+q}")
                a(f"v_fmac_f32 v{A+2*q}, v120, v{96+i}")
                a(f"v_fmac_f32 v{A+2*q+1}, v121, v{96+i}")
    for q in range(16):
        a("s_nop 1")
        a(f"v_add_f32_dpp v{AG+q}, v{AG+q}, v{AG+q} row_ror:4 row_mask:0xf bank_mask:0xf")
    for q in range(16):
        a("s_nop 1")
        a(f"v_add_f32_dpp v{AG+q}, v{AG+q}, v{AG+q} row_ror:8 row_mask:0xf bank_mask:0xf")
    for sw in ("v_permlane16_swap_b32", "v_permlane32_swap_b32"):
        for q in range(16):
            a(f"v_mov_b32 v{124+q}, v{AG+q}")
        a("s_nop 1")
        for q in range(16):
            a(f"{sw} v{AG+q}, v{124+q}")
        a("s_nop 1")
        for q in range(16):
            a(f"v_add_f32 v{AG+q}, v{AG+q}, v{124+q}")
    a(f"""
s_lshl_b32 s38, s{S_WAVE}, 8
v_lshlrev_b32 v10, 5, v{V_LANE}
v_add_u32 v10, s38, v10
s_mov_b64 exec, 0xf
ds_write_b128 v10, v[{AG}:{AG+3}] offset:{L_P}
ds_write_b128 v10, v[{AG+4}:{AG+7}] offset:{L_P+16}
ds_write_b128 v10, v[{AU}:{AU+3}] offset:{L_P+128}
ds_write_b128 v10, v[{AU+4}:{AU+7}] offset:{L_P+144}
s_mov_b64 exec, -1
s_waitcnt lgkmcnt(0)
s_barrier
s_cmp_lg_u32 s{S_WAVE}, 0
s_cbranch_scc1 K2A_NOH
v_and_b32 v10, 31, v{V_LANE}
v_lshlrev_b32 v10, 2, v10
""")
    for w in range(8):
        a(f"ds_read_b32 v{96+w}, v10 offset:{L_P + 256*w}")
        a(f"ds_read_b32 v{104+w}, v10 offset:{L_P + 256*w + 128}")
    a("s_waitcnt lgkmcnt(0)")
    for w in range(1, 8):
        a(f"v_add_f32 v96, v96, v{96+w}")
        a(f"v_add_f32 v104, v104, v{104+w}")
    a(f"""
v_cvt_pk_bf16_f32 v97, v96, v104
v_lshlrev_b32 v96, 16, v97            ; g_b
v_and_b32 v104, 0xffff0000, v97       ; u_b
v_mul_f32 v98, 0xbfb8aa3b, v96
v_exp_f32 v98, v98
s_nop 0
v_add_f32 v98, 1.0, v98
v_rcp_f32 v98, v98
s_nop 0
v_mul_f32 v98, v96, v98               ; silu
v_cvt_pk_bf16_f32 v98, v98, v98
v_and_b32 v98, 0xffff0000, v98
v_mul_f32 v98, v98, v104
v_cvt_pk_bf16_f32 v98, v98, v98
v_and_b32 v98, 0xffff0000, v98        ; h
s_mov_b32 exec_hi, 0
ds_write_b32 v10, v98 offset:{L_H}
s_mov_b64 exec, -1
K2A_NOH:
s_waitcnt lgkmcnt(0)
s_barrier
s_cmp_ge_u32 s{S_WAVE}, 5
s_cbranch_scc1 K2A_NOD
v_lshlrev_b32 v10, 5, v4             ; rgd*8*4
ds_read_b128 v[96:99], v10 offset:{L_H}
ds_read_b128 v[100:103], v10 offset:{L_H+16}
""")
    for q in range(8):
        a(f"v_mov_b32 v{104+q}, 0")
    a("s_waitcnt lgkmcnt(0)")
    for i in range(8):
        for q in range(4):
            a(f"v_lshlrev_b32 v120, 16, v{DW+4*i+q}")
            a(f"v_and_b32 v121, 0xffff0000, v{DW+4*i+q}")
            a(f"v_fmac_f32 v{104+2*q}, v120, v{96+i}")
            a(f"v_fmac_f32 v{105+2*q}, v121, v{96+i}")
    a(f"""
v_mul_u32_u24 v10, 2560, v4
v_lshlrev_b32 v11, 5, v5
v_add_u32 v10, v10, v11
ds_write_b128 v10, v[104:107] offset:{L_Y}
ds_write_b128 v10, v[108:111] offset:{L_Y+16}
K2A_NOD:
s_waitcnt lgkmcnt(0)
s_barrier
s_cmp_ge_u32 s{S_WAVE}, 3
s_cbranch_scc1 K2A_NOS
v_lshlrev_b32 v10, 4, v0
ds_read_b128 v[96:99], v10 offset:{L_Y}
ds_read_b128 v[100:103], v10 offset:{L_Y+2560}
ds_read_b128 v[104:107], v10 offset:{L_Y+5120}
ds_read_b128 v[108:111], v10 offset:{L_Y+7680}
s_waitcnt lgkmcnt(0)
""")
    for q in range(4):
        a(f"v_add_f32 v{96+q}, v{96+q}, v{100+q}")
        a(f"v_add_f32 v{104+q}, v{104+q}, v{108+q}")
        a(f"v_add_f32 v{96+q}, v{96+q}, v{104+q}")
    a(f"""
s_mul_i32 s38, s2, 2560
s_add_u32 s38, s38, {WS_YPART}
v_cmp_gt_u32 vcc, 160, v0
s_and_saveexec_b64 s[64:65], vcc
buffer_store_dwordx4 v[96:99], v10, s[{S_WS}:{S_WS+3}], s38 offen sc0 sc1
s_mov_b64 exec, s[64:65]
s_waitcnt vmcnt(0)
K2A_NOS:
s_barrier
s_cmp_lg_u32 s{S_WAVE}, 0
s_cbranch_scc1 K2_END
v_mov_b32 v10, 0
v_mov_b32 v11, 1
s_mov_b64 exec, 1
buffer_atomic_add v11, v10, s[{S_DBG}:{S_DBG+3}], 0 offen
s_branch K2_END
""")
```

```python
import sys
from common import *
import k1
def main(out, with_k2=True):
    hdr = open('parallel_sum__linear_kernel_hedgehog__moe_arch_mod__prompt.s.ref').read().split("\n")
    top = [l for l in hdr if l.startswith(";") and "@launch" not in l]
    lead = []
    for l in hdr:
        if l.startswith(";"):
            if "@launch" in l: continue
            lead.append(l)
        else:
            break
    s = "\n".join(lead) + "\n"
    s += f"; @launch kernel=k1_kernel grid=(256,1,1) block=({k1.K1_BLOCK},1,1) lds={k1.K1_LDS}\n"
    if with_k2:
        import k2
        s += f"; @launch kernel=k2_kernel grid=({k2.K2_GRID},1,1) block=(512,1,1) lds={k2.K2_LDS}\n"
    s += '.amdgcn_target "amdgcn-amd-amdhsa--gfx950"\n.text\n'
    s += k1.gen_k1()
    if with_k2:
        s += k2.gen_k2()
    s += '.section .rodata,"a"\n'
    s += kdesc("k1_kernel", k1.K1_VGPR)
    if with_k2:
        s += kdesc("k2_kernel", k2.K2_VGPR)
    open(out, "w").write(s)
if __name__ == "__main__":
    main(sys.argv[1], len(sys.argv) < 3)
```

```python
class Asm:
    def __init__(self):
        self.lines = []
        self.lbl = 0
    def __call__(self, s):
        for ln in s.strip("\n").split("\n"):
            self.lines.append("    " + ln.strip() if ln.strip() and not ln.strip().endswith(":") else ln.strip())
    def label(self, name):
        self.lines.append(name + ":")
    def newlabel(self, prefix="L"):
        self.lbl += 1
        return f"{prefix}_{self.lbl}"
    def text(self):
        return "\n".join(self.lines) + "\n"

def vr(a, n=1):
    return f"v{a}" if n == 1 else f"v[{a}:{a+n-1}]"
def sr(a, n=1):
    return f"s{a}" if n == 1 else f"s[{a}:{a+n-1}]"

WS_KVACC = 0
WS_STATS = 0x20000
WS_AMAX  = 0x28000
WS_YPART = 0x30000
WS_WOP   = 0x100000
WS_PQ    = 0x200000
WS_BYTES = 0x10000000

def kdesc(name, vgpr, sgpr=102):
    acc = (vgpr + 3) // 4 * 4
    return f""".p2align 6
.amdhsa_kernel {name}
  .amdhsa_next_free_vgpr {vgpr}
  .amdhsa_next_free_sgpr {sgpr}
  .amdhsa_accum_offset {acc}
  .amdhsa_group_segment_fixed_size 0
  .amdhsa_kernarg_size 96
  .amdhsa_user_sgpr_count 2
  .amdhsa_user_sgpr_kernarg_segment_ptr 1
  .amdhsa_system_sgpr_workgroup_id_x 1
.end_amdhsa_kernel
"""
def kstart(name):
    return f".globl {name}\n.p2align 8\n.type {name},@function\n{name}:\n"

import os
STAMPS = os.environ.get("STAMPS", "0") == "1"
WS_TS1 = 0x8000000
WS_TS2 = 0x8100000
class Stamper:
    def __init__(self, first_sgpr, maxn, regs=None):
        self.first = first_sgpr; self.n = 0; self.maxn = maxn; self.names = []
        self.regs = regs if regs else [first_sgpr + 2*i for i in range(maxn)]
    def stamp(self, a, name, idx=None):
        if not STAMPS: return
        i = self.n if idx is None else idx
        if idx is None: self.n += 1
        assert i < self.maxn
        while len(self.names) <= i: self.names.append(None)
        self.names[i] = name
        a(f"s_memrealtime s[{self.regs[i]}:{self.regs[i]+1}]")
    def flush(self, a, ws_srd, base, wave_sgpr, lbl):
        if not STAMPS: return
        a(f"s_cmp_lg_u32 s{wave_sgpr}, 0")
        a(f"s_cbranch_scc1 {lbl}")
        a("s_waitcnt lgkmcnt(0)")
        a(f"s_lshl_b32 s38, s2, 7")
        a(f"s_add_u32 s38, s38, {base}")
        a("v_mov_b32 v10, 0")
        a("s_mov_b64 exec, 1")
        for i in range(self.maxn):
            a(f"v_mov_b32 v12, s{self.regs[i]}")
            a(f"v_mov_b32 v13, s{self.regs[i]+1}")
            a(f"buffer_store_dwordx2 v[12:13], v10, s[{ws_srd}:{ws_srd+3}], s38 offen offset:{8*i}")
            a("s_nop 1")
        a("s_mov_b64 exec, -1")
        a(f"{lbl}:")
```

```python
from common import *
import os
L_WKV = 0
L_WQ0 = 102400
L_XST = 138240
L_WPHI = 156672
L_ZERO = 161472
L_WR = 162368
L_MISC = 163648
L_EX = 51200
EXP = 288
K1_LDS = 163840
NPROD = 4
NCONS_W = 0
LWAIT = int(os.environ.get('LWAIT', '8'))
LWAITW = int(os.environ.get('LWAITW', '16'))
K1_BLOCK = 64*(8+NPROD)
K1_VGPR = 168
ROT_A = int(os.environ.get('ROT_A', '0')); ROT_B = int(os.environ.get('ROT_B', '0'))

S_X, S_W, S_WS, S_DBG, S_WPHI, S_WR, S_WO = 4, 8, 12, 16, 20, 24, 28
S_RB, S_PAIR, S_HALF, S_QIDX, S_LIGHT, S_WAVE = 32, 33, 34, 35, 36, 37
S_ONES, S_CLO, S_CHI = 68, 69, 70
S_L2E = 44
S_ROT = 73
V_LANE = 1
V_XO0, V_XO1, V_WKVO, V_WQO, V_XSW, V_XSR, V_TRB = 2, 3, 4, 5, 6, 7, 8
ACC = 16
XF = 64
WFB = [36, 40, 44, 48, 52, 56, 60, 144, 148, 152]
ST1 = Stamper(74, 14)

def wq_slot(s):
    if s < 7: return L_WQ0 + 5120 * s
    if s < 10: return L_XST + 5120 * (s - 7)
    return L_WKV + 5120 * (s - 10)

def emit_softmax(a):
    PKD, EM = 36, 144
    for i in range(10):
        a(f"v_cvt_pk_bf16_f32 v{PKD+i}, v{ACC+2*i}, v{ACC+2*i+1}")
    for i in range(10):
        a(f"v_lshlrev_b32 v{ACC+2*i}, 16, v{PKD+i}")
        a(f"v_and_b32 v{ACC+2*i+1}, 0xffff0000, v{PKD+i}")
    MX, MN = 46, 47
    P = ACC
    a(f"v_max3_f32 v{MX}, v{P}, v{P+1}, v{P+2}")
    a(f"v_min3_f32 v{MN}, v{P}, v{P+1}, v{P+2}")
    for i in range(3, 19, 2):
        a(f"v_max3_f32 v{MX}, v{MX}, v{P+i}, v{P+i+1}")
        a(f"v_min3_f32 v{MN}, v{MN}, v{P+i}, v{P+i+1}")
    a(f"v_max_f32 v{MX}, v{MX}, v{P+19}")
    a(f"v_min_f32 v{MN}, v{MN}, v{P+19}")
    AP, AM = 48, 50
    a(f"v_mul_f32 v{AP}, s{S_L2E}, v{MX}")
    a(f"v_mul_f32 v{AM}, s{S_L2E}, v{MN}")
    a(f"v_mov_b32 v{AP+1}, v{AP}")
    a(f"v_mov_b32 v{AM+1}, v{AM}")
    for i in range(10):
        a(f"v_pk_fma_f32 v[{EM+2*i}:{EM+2*i+1}], v[{P+2*i}:{P+2*i+1}], s[{S_L2E}:{S_L2E+1}], v[{AM}:{AM+1}] neg_lo:[1,0,0] neg_hi:[1,0,0]")
        a(f"v_pk_fma_f32 v[{P+2*i}:{P+2*i+1}], v[{P+2*i}:{P+2*i+1}], s[{S_L2E}:{S_L2E+1}], v[{AP}:{AP+1}] neg_lo:[0,0,1] neg_hi:[0,0,1]")
    for i in range(20):
        a(f"v_exp_f32 v{EM+i}, v{EM+i}")
        a(f"v_exp_f32 v{P+i}, v{P+i}")
    SP, SM = 52, 54
    a("s_nop 0")
    a(f"v_pk_add_f32 v[{SM}:{SM+1}], v[{EM}:{EM+1}], v[{EM+2}:{EM+3}]")
    a(f"v_pk_add_f32 v[{SP}:{SP+1}], v[{P}:{P+1}], v[{P+2}:{P+3}]")
    for i in range(2, 10):
        a(f"v_pk_add_f32 v[{SM}:{SM+1}], v[{SM}:{SM+1}], v[{EM+2*i}:{EM+2*i+1}]")
        a(f"v_pk_add_f32 v[{SP}:{SP+1}], v[{SP}:{SP+1}], v[{P+2*i}:{P+2*i+1}]")
    a(f"v_add_f32 v{SM}, v{SM}, v{SM+1}")
    a(f"v_add_f32 v{SP}, v{SP}, v{SP+1}")
    a(f"v_rcp_f32 v{SM}, v{SM}")
    a(f"v_rcp_f32 v{SP}, v{SP}")
    a("s_nop 0")
    a(f"v_mov_b32 v{SM+1}, v{SM}")
    a(f"v_mov_b32 v{SP+1}, v{SP}")
    for i in range(10):
        a(f"v_pk_mul_f32 v[{P+2*i}:{P+2*i+1}], v[{P+2*i}:{P+2*i+1}], v[{SP}:{SP+1}]")
        a(f"v_pk_mul_f32 v[{EM+2*i}:{EM+2*i+1}], v[{EM+2*i}:{EM+2*i+1}], v[{SM}:{SM+1}]")
    for i in range(10):
        a(f"v_cvt_pk_bf16_f32 v{36+i}, v{P+2*i}, v{P+2*i+1}")
    for i in range(10):
        a(f"v_cvt_pk_bf16_f32 v{46+i}, v{EM+2*i}, v{EM+2*i+1}")
    return 36

def emit_project(a, PB, VA_PHI):
    AF = 144
    for t in range(5):
        b = AF + 12 * (t & 1)
        for c in range(3):
            a(f"ds_read_b64_tr_b16 v[{b+4*c}:{b+4*c+1}], v{VA_PHI} offset:{(8*c)*40 + 8*t}")
            if c < 2:
                a(f"ds_read_b64_tr_b16 v[{b+4*c+2}:{b+4*c+3}], v{VA_PHI} offset:{(8*c+4)*40 + 8*t}")
            else:
                a(f"v_mov_b32 v{b+4*c+2}, 0")
                a(f"v_mov_b32 v{b+4*c+3}, 0")
        if t > 0:
            pb = AF + 12 * ((t-1) & 1)
            a("s_waitcnt lgkmcnt(5)")
            for c in range(3):
                cc = "0" if c == 0 else f"v[{ACC+4*(t-1)}:{ACC+4*(t-1)+3}]"
                a(f"v_mfma_f32_16x16x32_bf16 v[{ACC+4*(t-1)}:{ACC+4*(t-1)+3}], v[{pb+4*c}:{pb+4*c+3}], v[{PB+4*c}:{PB+4*c+3}], {cc}")
    a("s_waitcnt lgkmcnt(0)")
    pb = AF + 12 * (4 & 1)
    for c in range(3):
        cc = "0" if c == 0 else f"v[{ACC+16}:{ACC+19}]"
        a(f"v_mfma_f32_16x16x32_bf16 v[{ACC+16}:{ACC+19}], v[{pb+4*c}:{pb+4*c+3}], v[{PB+4*c}:{PB+4*c+3}], {cc}")
    a("s_nop 7")
    a("s_nop 1")

def emit_kloop(a, slots, first_pass, hooks=None):
    def reads(s, buf):
        a(f"v_add_u32 v9, {slots[s]}, v{V_TRB}")
        for t in range(5):
            r = WFB[5*buf + t]
            a(f"ds_read_b64_tr_b16 v[{r}:{r+1}], v9 offset:{8*t}")
            a(f"ds_read_b64_tr_b16 v[{r+2}:{r+3}], v9 offset:{2560+8*t}")
    def mfmas(s, buf):
        for t in range(5):
            r = WFB[5*buf + t]
            c = f"v[{ACC+4*t}:{ACC+4*t+3}]" if s > 0 else "0"
            a(f"v_mfma_f32_16x16x32_bf16 v[{ACC+4*t}:{ACC+4*t+3}], v[{r}:{r+3}], v[{XF+4*s}:{XF+4*s+3}], {c}")
    if first_pass:
        for b in range(5):
            a("s_waitcnt vmcnt(0) lgkmcnt(0)" if b == 0 else "s_waitcnt lgkmcnt(0)")
            a("s_barrier")
            ST1.stamp(a, f'b{b}', 4+b)
            if hooks and b in hooks:
                a.lines += hooks[b].lines
            for j in range(4):
                s = 4*b + j
                if j == 0:
                    reads(s, s & 1)
                if j < 3:
                    reads(s+1, (s+1) & 1)
                    a("s_waitcnt lgkmcnt(10)")
                else:
                    a("s_waitcnt lgkmcnt(0)")
                mfmas(s, s & 1)
    else:
        reads(0, 0)
        for s in range(20):
            if s < 19:
                reads(s+1, (s+1) & 1)
                a("s_waitcnt lgkmcnt(10)")
            else:
                a("s_waitcnt lgkmcnt(0)")
            mfmas(s, s & 1)

def emit_wdma4(a, voff, s, ldsbase, ng=None):
    if ng is None: ng = 8 // NPROD
    a(f"s_lshl_b32 s39, s{S_ROT}, 1")
    a(f"s_add_u32 s39, s39, {s}")
    a(f"s_sub_u32 s40, s39, 20")
    a(f"s_cmp_ge_u32 s39, 20")
    a(f"s_cselect_b32 s39, s40, s39")
    a(f"s_mul_i32 s39, s39, {32*3840}")
    a(f"s_add_u32 s39, s39, s71")
    a(f"s_add_u32 m0, s72, {ldsbase}")
    for g in range(ng):
        a(f"buffer_load_dwordx4 v{voff}, s[{S_W}:{S_W+3}], s39 offen lds")
        if g < ng-1:
            a(f"s_add_u32 m0, m0, 640")
            a(f"s_add_u32 s39, s39, 15360")

def gen_k1():
    a = Asm()
    a.lines.append(kstart("k1_kernel"))
    ST1.stamp(a, 'entry', 0)
    a(f"""
s_cmp_ge_u32 s2, 256
s_cbranch_scc1 K1_END
s_load_dwordx8 s[48:55], s[0:1], 0
s_load_dwordx2 s[56:57], s[0:1], 40
s_load_dwordx4 s[60:63], s[0:1], 80
v_and_b32 v{V_LANE}, 63, v0
v_lshrrev_b32 v10, 6, v0
s_nop 0
v_readfirstlane_b32 s{S_WAVE}, v10
; decode
s_and_b32 s38, s2, 7
s_lshr_b32 s39, s2, 3
s_and_b32 s40, s38, 3
s_lshl_b32 s40, s40, 2
s_and_b32 s41, s39, 3
s_add_u32 s{S_RB}, s40, s41
s_lshr_b32 s{S_HALF}, s38, 2
s_lshr_b32 s41, s39, 2            ; pl
s_lshl_b32 s40, s{S_HALF}, 3
s_add_u32 s{S_PAIR}, s40, s41
s_lshr_b32 s40, 0xA5, s41
s_and_b32 s{S_LIGHT}, s40, 1
s_lshl_b32 s40, 1, s41
s_sub_u32 s40, s40, 1
s_and_b32 s40, s40, 0xA5
s_bcnt1_i32_b32 s{S_QIDX}, s40
s_and_b32 s40, s39, 3
s_mul_i32 s40, s40, {ROT_A}
s_mul_i32 s{S_ROT}, s41, {ROT_B}
s_add_u32 s{S_ROT}, s{S_ROT}, s40
s_mul_i32 s40, s{S_ROT}, 52429
s_lshr_b32 s40, s40, 19
s_mul_i32 s40, s40, 10
s_sub_u32 s{S_ROT}, s{S_ROT}, s40           ; rot (0..9)
s_mov_b32 s{S_ONES}, 0x3f803f80
s_mov_b32 s{S_CLO}, 0x00003f80
s_mov_b32 s{S_CHI}, 0x3f800000
s_mov_b32 s{S_L2E}, 0x3fb8aa3b
s_mov_b32 s{S_L2E+1}, 0x3fb8aa3b
s_waitcnt lgkmcnt(0)
s_mov_b32 s{S_X}, s48
s_mov_b32 s{S_X+1}, s49
s_mov_b32 s{S_X+2}, 2621440
s_mov_b32 s{S_X+3}, 0x20000
s_mov_b32 s{S_W}, s50
s_mov_b32 s{S_W+1}, s51
s_mov_b32 s{S_W+2}, 2457600
s_mov_b32 s{S_W+3}, 0x20000
s_mov_b32 s{S_WPHI}, s52
s_mov_b32 s{S_WPHI+1}, s53
s_mov_b32 s{S_WPHI+2}, 25600
s_mov_b32 s{S_WPHI+3}, 0x20000
s_mov_b32 s{S_WO}, s54
s_mov_b32 s{S_WO+1}, s55
s_mov_b32 s{S_WO+2}, 819200
s_mov_b32 s{S_WO+3}, 0x20000
s_mov_b32 s{S_WR}, s56
s_mov_b32 s{S_WR+1}, s57
s_mov_b32 s{S_WR+2}, 1280
s_mov_b32 s{S_WR+3}, 0x20000
s_mov_b32 s{S_DBG}, s60
s_mov_b32 s{S_DBG+1}, s61
s_mov_b32 s{S_DBG+2}, 256
s_mov_b32 s{S_DBG+3}, 0x20000
s_mov_b32 s{S_WS}, s62
s_mov_b32 s{S_WS+1}, s63
s_mov_b32 s{S_WS+2}, {WS_BYTES}
s_mov_b32 s{S_WS+3}, 0x20000
v_mul_u32_u24 v10, 26, v{V_LANE}
v_lshrrev_b32 v10, 8, v10            ; l/10
v_mul_u32_u24 v11, 10, v10
v_sub_u32 v11, v{V_LANE}, v11        ; cir
s_movk_i32 s39, 3840
v_mul_lo_u32 v10, v10, s39
v_lshlrev_b32 v12, 4, v11
v_add_u32 v10, v10, v12
s_mul_i32 s38, s{S_HALF}, 640
s_mul_i32 s39, s{S_QIDX}, 160
s_add_u32 s38, s38, s39
v_add_u32 v{V_WQO}, s38, v10
s_mul_i32 s38, s{S_PAIR}, 80
s_add_u32 s39, s38, 1280
s_add_u32 s40, s38, 2480
v_mov_b32 v12, s39
v_mov_b32 v13, s40
v_cmp_gt_u32 vcc, 5, v11
s_nop 1
v_cndmask_b32 v12, v13, v12, vcc
v_add_u32 v{V_WKVO}, v10, v12
s_cmp_ge_u32 s{S_WAVE}, 8
s_cbranch_scc1 K1_PROD
""")
    a(f"""
s_lshl_b32 s38, s{S_RB}, 7
s_lshl_b32 s39, s{S_WAVE}, 4
s_add_u32 s38, s38, s39
v_lshrrev_b32 v10, 3, v{V_LANE}
v_add_u32 v10, s38, v10
s_movk_i32 s39, 1280
v_mul_lo_u32 v10, v10, s39
v_and_b32 v11, 7, v{V_LANE}
v_lshlrev_b32 v11, 4, v11
v_add_u32 v{V_XO0}, v10, v11
v_add_u32 v{V_XO1}, 10240, v{V_XO0}
""")
    a(f"""
s_cmp_lg_u32 s{S_RB}, 0
s_cbranch_scc1 K1_NOZERO
v_cmp_gt_u32 vcc, 420, v0
s_and_saveexec_b64 s[64:65], vcc
s_cbranch_execz K1_ZERO_DONE
v_mov_b32 v10, 0
v_mov_b32 v11, 0
v_mov_b32 v12, 0
v_mov_b32 v13, 0
v_lshlrev_b32 v14, 4, v0
s_mul_i32 s38, s{S_PAIR}, 6720
buffer_store_dwordx4 v[10:13], v14, s[{S_WS}:{S_WS+3}], s38 offen sc0 sc1
K1_ZERO_DONE:
s_mov_b64 exec, s[64:65]
K1_NOZERO:
""")
    a(f"""
s_cmp_ge_u32 s{S_WAVE}, 5
s_cbranch_scc1 K1_MISC_WR
s_mul_i32 s38, s{S_PAIR}, 1600
s_lshl_b32 s39, s{S_HALF}, 4
s_lshl_b32 s40, s{S_QIDX}, 2
s_add_u32 s39, s39, s40
s_mul_i32 s39, s39, 800
s_sub_u32 s39, s39, 1600
v_lshlrev_b32 v10, 4, v0
v_mov_b32 v11, s38
v_mov_b32 v12, s39
v_cmp_gt_u32 vcc, 100, v0
s_nop 1
v_cndmask_b32 v11, v12, v11, vcc
v_add_u32 v10, v10, v11
s_lshl_b32 s38, s{S_WAVE}, 10
s_add_u32 m0, s38, {L_WPHI}
v_cmp_gt_u32 vcc, 300, v0
s_and_saveexec_b64 s[64:65], vcc
buffer_load_dwordx4 v10, s[{S_WPHI}:{S_WPHI+3}], 0 offen lds
s_mov_b64 exec, s[64:65]
s_branch K1_MISC_DONE
K1_MISC_WR:
s_cmp_ge_u32 s{S_WAVE}, 7
s_cbranch_scc1 K1_MISC_ZERO
v_subrev_u32 v11, 320, v0
v_lshlrev_b32 v10, 4, v11
s_sub_u32 s38, s{S_WAVE}, 5
s_lshl_b32 s38, s38, 10
s_add_u32 m0, s38, {L_WR}
v_cmp_gt_u32 vcc, 80, v11
s_and_saveexec_b64 s[64:65], vcc
buffer_load_dwordx4 v10, s[{S_WR}:{S_WR+3}], 0 offen lds
s_mov_b64 exec, s[64:65]
s_branch K1_MISC_DONE
K1_MISC_ZERO:
v_mov_b32 v10, 0
v_mov_b32 v11, 0
v_mov_b32 v12, 0
v_mov_b32 v13, 0
v_lshlrev_b32 v14, 4, v{V_LANE}
v_add_u32 v14, {L_ZERO}, v14
v_cmp_gt_u32 vcc, 56, v{V_LANE}
s_and_saveexec_b64 s[64:65], vcc
ds_write_b128 v14, v[10:13]
s_mov_b64 exec, s[64:65]
K1_MISC_DONE:
""")
    def xloads():
        a(f"s_mov_b32 s40, s{S_ROT}")
        for i in range(10):
            a("s_lshl_b32 s41, s40, 7")
            a(f"buffer_load_dwordx4 v[{XF+8*i}:{XF+8*i+3}], v{V_XO0}, s[{S_X}:{S_X+3}], s41 offen")
            a(f"buffer_load_dwordx4 v[{XF+8*i+4}:{XF+8*i+7}], v{V_XO1}, s[{S_X}:{S_X+3}], s41 offen")
            a("s_add_u32 s40, s40, 1")
            a("s_cmp_eq_u32 s40, 10")
            a("s_cselect_b32 s40, 0, s40")
    a(f"s_and_b32 s46, s{S_PAIR}, 7")
    a(f"s_cmp_lg_u32 s{S_WAVE}, s46")
    a("s_cbranch_scc1 K1_XNL")
    xloads()
    a(f"s_waitcnt vmcnt({LWAIT})")
    a("s_barrier")
    a("s_branch K1_XJ")
    a("K1_XNL:")
    a("s_barrier")
    xloads()
    a("K1_XJ:")
    ST1.stamp(a, 'issued', 1)
    a(f"""
s_mul_i32 s39, s{S_WAVE}, 2304
s_add_u32 s39, s39, {L_XST}
v_lshrrev_b32 v10, 3, v{V_LANE}
v_mul_u32_u24 v10, 144, v10
v_and_b32 v11, 7, v{V_LANE}
v_lshlrev_b32 v11, 4, v11
v_add3_u32 v{V_XSW}, v10, v11, s39
v_and_b32 v10, 15, v{V_LANE}
v_mul_u32_u24 v10, 144, v10
v_lshrrev_b32 v11, 4, v{V_LANE}
v_lshlrev_b32 v11, 3, v11
v_add3_u32 v{V_XSR}, v10, v11, s39
v_lshrrev_b32 v10, 2, v{V_LANE}
v_mul_u32_u24 v10, 160, v10
v_and_b32 v11, 3, v{V_LANE}
v_mul_u32_u24 v11, 40, v11
v_add_u32 v{V_TRB}, v10, v11
""")
    S1, S1b, S2, S2b = 36, 37, 38, 39
    for r in (S1, S1b, S2, S2b):
        a(f"v_mov_b32 v{r}, 0")
    for i in range(10):
        a(f"s_waitcnt vmcnt({2*(9-i)})")
        a(f"ds_write_b128 v{V_XSW}, v[{XF+8*i}:{XF+8*i+3}]")
        a(f"ds_write_b128 v{V_XSW}, v[{XF+8*i+4}:{XF+8*i+7}] offset:1152")
        if i > 0:
            for j in range(8):
                r = XF + 8*(i-1) + j
                a(f"v_dot2_f32_bf16 v{S1 + (j&1)}, v{r}, s{S_ONES}, v{S1 + (j&1)}")
                a(f"v_dot2_f32_bf16 v{S2 + (j&1)}, v{r}, v{r}, v{S2 + (j&1)}")
        a("s_waitcnt lgkmcnt(0)")
        a(f"ds_read2_b64 v[{XF+8*i}:{XF+8*i+3}], v{V_XSR} offset0:0 offset1:4")
        a(f"ds_read2_b64 v[{XF+8*i+4}:{XF+8*i+7}], v{V_XSR} offset0:8 offset1:12")
        a("s_waitcnt lgkmcnt(0)")
    for j in range(8):
        r = XF + 72 + j
        a(f"v_dot2_f32_bf16 v{S1 + (j&1)}, v{r}, s{S_ONES}, v{S1 + (j&1)}")
        a(f"v_dot2_f32_bf16 v{S2 + (j&1)}, v{r}, v{r}, v{S2 + (j&1)}")
    ST1.stamp(a, 'xstaged', 2)
    a("s_nop 3")
    a(f"v_add_f32 v{S1}, v{S1}, v{S1b}")
    a(f"v_add_f32 v{S2}, v{S2}, v{S2b}")
    for sw in ("v_permlane16_swap_b32", "v_permlane32_swap_b32"):
        a(f"v_mov_b32 v40, v{S1}")
        a(f"v_mov_b32 v41, v{S2}")
        a("s_nop 1")
        a(f"{sw} v{S1}, v40")
        a(f"{sw} v{S2}, v41")
        a("s_nop 1")
        a(f"v_add_f32 v{S1}, v{S1}, v40")
        a(f"v_add_f32 v{S2}, v{S2}, v41")
    NEGM, RS, MB = 10, 12, 14
    a(f"""
v_mul_f32 v{S1}, 0x3acccccd, v{S1}        ; mean (1/640)
v_mul_f32 v{S2}, 0x3acccccd, v{S2}        ; E[x^2]
v_fma_f32 v{S2}, -v{S1}, v{S1}, v{S2}     ; var
v_max_f32 v{S2}, 0, v{S2}
v_cvt_pk_bf16_f32 v40, v{S1}, v{S2}
v_lshlrev_b32 v{MB}, 16, v40              ; m_b
v_and_b32 v41, 0xffff0000, v40            ; v_b
v_add_f32 v41, 0x3727c5ac, v41            ; + 1e-5
v_cvt_pk_bf16_f32 v41, v41, v41
v_and_b32 v41, 0xffff0000, v41
v_sqrt_f32 v41, v41
s_nop 0
v_cvt_pk_bf16_f32 v41, v41, v41
v_and_b32 v41, 0xffff0000, v41            ; s
v_rcp_f32 v{RS}, v41
v_sub_f32 v{NEGM}, 0, v{MB}
s_nop 0
v_mov_b32 v{RS+1}, v{RS}
""")
    T = 40
    for s in range(20):
        x = XF + 4*s
        t = T + 12*(s & 1)
        for j in range(4):
            a(f"v_dot2_f32_bf16 v{t+2*j}, v{x+j}, s{S_CLO}, v{NEGM}")
            a(f"v_dot2_f32_bf16 v{t+2*j+1}, v{x+j}, s{S_CHI}, v{NEGM}")
        if s > 0:
            xp = XF + 4*(s-1); tp = T + 12*((s-1) & 1)
            for j in range(4):
                a(f"v_lshlrev_b32 v{tp+2*j}, 16, v{tp+8+j}")
                a(f"v_and_b32 v{tp+2*j+1}, 0xffff0000, v{tp+8+j}")
            for j in range(4):
                a(f"v_pk_mul_f32 v[{tp+2*j}:{tp+2*j+1}], v[{tp+2*j}:{tp+2*j+1}], v[{RS}:{RS+1}]")
            for j in range(4):
                a(f"v_cvt_pk_bf16_f32 v{xp+j}, v{tp+2*j}, v{tp+2*j+1}")
        else:
            a("s_nop 2")
        for j in range(4):
            a(f"v_cvt_pk_bf16_f32 v{t+8+j}, v{t+2*j}, v{t+2*j+1}")
    xp = XF + 76; tp = T + 12
    for j in range(4):
        a(f"v_lshlrev_b32 v{tp+2*j}, 16, v{tp+8+j}")
        a(f"v_and_b32 v{tp+2*j+1}, 0xffff0000, v{tp+8+j}")
    for j in range(4):
        a(f"v_pk_mul_f32 v[{tp+2*j}:{tp+2*j+1}], v[{tp+2*j}:{tp+2*j+1}], v[{RS}:{RS+1}]")
    for j in range(4):
        a(f"v_cvt_pk_bf16_f32 v{xp+j}, v{tp+2*j}, v{tp+2*j+1}")
    ST1.stamp(a, 'ln', 3)
    h0 = Asm()
    h0(f"""
s_cmp_lg_u32 s{S_WAVE}, 0
s_cbranch_scc1 K1_A0_NOFLAG
s_cmp_lg_u32 s{S_RB}, 0
s_cbranch_scc1 K1_A0_NOFLAG
v_mov_b32 v46, 1
s_lshl_b32 s40, s{S_PAIR}, 2
v_mov_b32 v47, s40
s_mov_b64 exec, 1
buffer_store_dword v46, v47, s[{S_DBG}:{S_DBG+3}], 0 offen sc0 sc1
s_mov_b64 exec, -1
K1_A0_NOFLAG:
s_cmp_lg_u32 s{S_PAIR}, 0
s_cbranch_scc1 K1_NOR
s_lshl_b32 s39, s{S_RB}, 7
s_lshl_b32 s40, s{S_WAVE}, 4
s_add_u32 s41, s39, s40
v_add_u32 v40, s41, v{V_LANE}
v_lshlrev_b32 v41, 3, v40
v_mov_b32 v46, v{MB}
v_mov_b32 v47, v{RS}
s_mov_b64 exec, 0xffff
s_mov_b32 s40, {WS_STATS}
buffer_store_dwordx2 v[46:47], v41, s[{S_WS}:{S_WS+3}], s40 offen
s_mov_b64 exec, -1
v_lshrrev_b32 v41, 4, v{V_LANE}
v_lshlrev_b32 v41, 3, v41
v_add_u32 v41, {L_WR}, v41
v_mov_b32 v36, 0
v_mov_b32 v37, 0
""")
    for s in range(20):
        h0(f"s_lshl_b32 s39, s{S_ROT}, 1")
        h0(f"s_add_u32 s39, s39, {s}")
        h0(f"s_sub_u32 s40, s39, 20")
        h0(f"s_cmp_ge_u32 s39, 20")
        h0(f"s_cselect_b32 s39, s40, s39")
        h0(f"s_lshl_b32 s39, s39, 6")
        h0(f"v_add_u32 v45, s39, v41")
        h0(f"ds_read2_b64 v[48:51], v45 offset0:0 offset1:4")
        h0("s_waitcnt lgkmcnt(0)")
        for j in range(4):
            h0(f"v_dot2_f32_bf16 v{36 + (j&1)}, v{XF+4*s+j}, v{48+j}, v{36 + (j&1)}")
        h0("s_nop 1")
    h0("s_nop 3")
    h0(f"v_add_f32 v36, v36, v37")
    for sw in ("v_permlane16_swap_b32", "v_permlane32_swap_b32"):
        h0(f"v_mov_b32 v46, v36")
        h0("s_nop 1")
        h0(f"{sw} v36, v46")
        h0("s_nop 1")
        h0(f"v_add_f32 v36, v36, v46")
    h0(f"""
v_cvt_pk_bf16_f32 v46, v36, v36
v_and_b32 v46, 0xffff0000, v46
v_ashrrev_i32 v47, 31, v46
v_or_b32 v47, 0x80000000, v47
v_xor_b32 v46, v46, v47
v_and_b32 v46, 0xffff0000, v46
v_and_b32 v47, 15, v{V_LANE}
v_add_u32 v47, s41, v47               ; token
v_sub_u32 v47, 2047, v47
v_or_b32 v46, v46, v47                ; key
s_nop 1
v_max_u32_dpp v46, v46, v46 row_ror:1 row_mask:0xf bank_mask:0xf
s_nop 1
v_max_u32_dpp v46, v46, v46 row_ror:2 row_mask:0xf bank_mask:0xf
s_nop 1
v_max_u32_dpp v46, v46, v46 row_ror:4 row_mask:0xf bank_mask:0xf
s_nop 1
v_max_u32_dpp v46, v46, v46 row_ror:8 row_mask:0xf bank_mask:0xf
s_lshl_b32 s40, s{S_WAVE}, 2
s_add_u32 s40, s40, {L_MISC}
v_mov_b32 v47, s40
s_mov_b64 exec, 1
ds_write_b32 v47, v46
s_mov_b64 exec, -1
K1_NOR:
""")
    h1 = Asm()
    h1(f"""
s_cmp_lg_u32 s{S_WAVE}, 0
s_cbranch_scc1 K1_A1_DONE
s_cmp_lg_u32 s{S_PAIR}, 0
s_cbranch_scc1 K1_A1_DONE
v_mov_b32 v47, {L_MISC}
ds_read_b128 v[48:51], v47
ds_read_b128 v[52:55], v47 offset:16
s_waitcnt lgkmcnt(0)
v_max_u32 v48, v48, v49
v_max_u32 v50, v50, v51
v_max_u32 v52, v52, v53
v_max_u32 v54, v54, v55
v_max_u32 v48, v48, v50
v_max_u32 v52, v52, v54
v_max_u32 v48, v48, v52
s_lshl_b32 s40, s{S_RB}, 2
s_add_u32 s40, s40, {WS_AMAX}
v_mov_b32 v47, 0
s_mov_b64 exec, 1
buffer_store_dword v48, v47, s[{S_WS}:{S_WS+3}], s40 offen
s_mov_b64 exec, -1
K1_A1_DONE:
""")
    emit_kloop(a, [L_WKV + 5120*s for s in range(20)], True, {0: h0, 1: h1})
    ST1.stamp(a, 'kloop1', 9)
    PB = 36
    def emit_pack():
        a("s_nop 7")
        a("s_nop 1")
        for t in range(5):
            a(f"v_cvt_pk_bf16_f32 v{PB+2*t}, v{ACC+4*t}, v{ACC+4*t+1}")
            a(f"v_cvt_pk_bf16_f32 v{PB+2*t+1}, v{ACC+4*t+2}, v{ACC+4*t+3}")
        a(f"v_mov_b32 v{PB+10}, 0")
        a(f"v_mov_b32 v{PB+11}, 0")
    emit_pack()
    a(f"""
s_mul_i32 s39, s{S_WAVE}, {16*EXP}
s_add_u32 s39, s39, {L_EX}
v_and_b32 v10, 15, v{V_LANE}
v_mul_u32_u24 v10, {EXP}, v10
v_add_u32 v10, s39, v10
v_lshrrev_b32 v11, 4, v{V_LANE}       ; g
v_mul_u32_u24 v12, 40, v11
v_add_u32 v12, v12, v10
v_add_u32 v12, 80, v12
v_mul_u32_u24 v13, 80, v11
v_add_u32 v13, v13, v10
v_and_b32 v14, 3, v{V_LANE}           ; c
v_bfe_u32 v15, v{V_LANE}, 2, 2        ; r
v_mul_u32_u24 v15, 40, v15
v_mul_u32_u24 v9, 800, v11
v_add_u32 v15, v15, v9
v_add_u32 v15, {L_WPHI}, v15
v_mov_b32 v9, {L_ZERO}
v_cmp_eq_u32 vcc, v14, v11
v_cmp_gt_u32 s[64:65], 2, v11
s_nop 1
s_and_b64 vcc, vcc, s[64:65]
s_nop 1
v_cndmask_b32 v15, v9, v15, vcc
s_waitcnt lgkmcnt(0)
s_barrier
s_mov_b32 exec_lo, 0
""")
    for t in range(5):
        a(f"ds_write_b64 v12, v[{PB+2*t}:{PB+2*t+1}] offset:{8*t}")
    a(f"""
v_mov_b32 v48, 0x00003f80
v_mov_b32 v49, 0
ds_write_b64 v10, v[48:49] offset:240
s_mov_b64 exec, -1
""")
    emit_project(a, PB, 15)
    OUTR = emit_softmax(a)
    a("s_mov_b32 exec_hi, 0")
    for c in range(5):
        a(f"ds_write_b128 v13, v[{OUTR+4*c}:{OUTR+4*c+3}] offset:{16*c}")
    a("s_mov_b64 exec, -1")
    a("s_waitcnt lgkmcnt(0)")
    a("s_barrier")
    ST1.stamp(a, 'epi1', 10)
    a(f"""
s_cmp_ge_u32 s{S_WAVE}, 4
s_cbranch_scc1 K1_KV_DONE
s_lshr_b32 s40, s{S_WAVE}, 1          ; hh
s_and_b32 s41, s{S_WAVE}, 1           ; V
s_lshl_b32 s42, s{S_PAIR}, 2
v_mov_b32 v9, s42
buffer_load_dword v36, v9, s[{S_DBG}:{S_DBG+3}], 0 offen sc0 sc1
v_lshrrev_b32 v10, 2, v{V_LANE}
v_mul_u32_u24 v10, {EXP}, v10
v_add_u32 v10, {L_EX}, v10
v_and_b32 v11, 3, v{V_LANE}
v_lshlrev_b32 v12, 3, v11             ; 8c
s_mul_i32 s42, s40, 80
v_add3_u32 v13, v10, v12, s42
s_mul_i32 s42, s40, 40
s_add_u32 s42, s42, 160
v_add_u32 v14, s42, v12               ; V=0 piece
s_add_u32 s43, s42, 32
v_mov_b32 v15, 240
v_mov_b32 v9, s43
v_cmp_eq_u32 vcc, 0, v11
s_nop 1
v_cndmask_b32 v15, v15, v9, vcc       ; V=1 piece
s_cmp_eq_u32 s41, 0
s_cselect_b64 vcc, -1, 0
s_nop 1
v_cndmask_b32 v14, v15, v14, vcc
v_add_u32 v14, v14, v10               ; A addr
""")
    KAB = [40, 144]
    def kvreads(ks, KA):
        o = ks * 32 * EXP
        a(f"ds_read_b64_tr_b16 v[{KA}:{KA+1}], v14 offset:{o}")
        a(f"ds_read_b64_tr_b16 v[{KA+2}:{KA+3}], v14 offset:{o + 16*EXP}")
        for Tt in range(3):
            a(f"ds_read_b64_tr_b16 v[{KA+4+4*Tt}:{KA+5+4*Tt}], v13 offset:{o + 32*Tt}")
            a(f"ds_read_b64_tr_b16 v[{KA+6+4*Tt}:{KA+7+4*Tt}], v13 offset:{o + 16*EXP + 32*Tt}")
    kvreads(0, KAB[0])
    for ks in range(4):
        KA = KAB[ks & 1]
        if ks < 3:
            kvreads(ks+1, KAB[(ks+1) & 1])
            a("s_waitcnt lgkmcnt(8)")
        else:
            a("s_waitcnt lgkmcnt(0)")
        for Tt in range(3):
            c = f"v[{ACC+4*Tt}:{ACC+4*Tt+3}]" if ks > 0 else "0"
            a(f"v_mfma_f32_16x16x32_bf16 v[{ACC+4*Tt}:{ACC+4*Tt+3}], v[{KA}:{KA+3}], v[{KA+4+4*Tt}:{KA+7+4*Tt}], {c}")
    a(f"""
s_lshl_b32 s42, s{S_PAIR}, 2
v_mov_b32 v10, s42
s_waitcnt vmcnt(0)
s_nop 0
v_readfirstlane_b32 s43, v36
s_nop 3
s_cmp_lg_u32 s43, 0
s_cbranch_scc1 K1_POLLED
K1_POLL:
buffer_load_dword v36, v10, s[{S_DBG}:{S_DBG+3}], 0 offen sc0 sc1
s_waitcnt vmcnt(0)
s_nop 0
v_readfirstlane_b32 s43, v36
s_nop 3
s_cmp_lg_u32 s43, 0
s_cbranch_scc1 K1_POLLED
s_sleep 2
s_branch K1_POLL
K1_POLLED:
v_lshrrev_b32 v10, 4, v{V_LANE}
v_mul_u32_u24 v10, 640, v10
v_and_b32 v11, 15, v{V_LANE}
v_lshlrev_b32 v11, 2, v11
v_add_u32 v10, v10, v11
s_lshl_b32 s42, s{S_PAIR}, 1
s_add_u32 s42, s42, s40
s_mul_i32 s42, s42, 3360
s_mul_i32 s43, s41, 2560
s_add_u32 s42, s42, s43
s_cmp_eq_u32 s41, 0
s_cselect_b32 s46, -1, -1
s_cselect_b32 s47, -1, 0
s_cselect_b32 s38, -1, 0xffff
s_cselect_b32 s39, -1, 0
s_mov_b32 s64, 0x00ff00ff
s_mov_b32 s65, 0x00ff00ff
""")
    for Tt in range(3):
        for i in range(4):
            lo, hi = ("s46", "s47") if i == 0 else ("s38", "s39")
            if Tt < 2:
                a(f"s_mov_b32 exec_lo, {lo}")
                a(f"s_mov_b32 exec_hi, {hi}")
            else:
                a(f"s_and_b32 exec_lo, {lo}, s64")
                a(f"s_and_b32 exec_hi, {hi}, s65")
            a(f"buffer_atomic_add_f32 v{ACC+4*Tt+i}, v10, s[{S_WS}:{S_WS+3}], s42 offen offset:{160*i + 64*Tt}")
    a("s_mov_b64 exec, -1")
    a(f"K1_KV_DONE:")
    ST1.stamp(a, 'kv', 11)
    a(f"s_cmp_eq_u32 s{S_LIGHT}, 0")
    a("s_cbranch_scc1 K1_TAIL")
    a("s_barrier")
    emit_kloop(a, [wq_slot(s) for s in range(20)], False)
    ST1.stamp(a, 'kloop2', 12)
    emit_pack()
    a(f"""
v_lshrrev_b32 v11, 4, v{V_LANE}       ; g
v_and_b32 v14, 3, v{V_LANE}           ; c
v_bfe_u32 v15, v{V_LANE}, 2, 2        ; r
v_mul_u32_u24 v15, 40, v15
v_mul_u32_u24 v9, 800, v11
v_add_u32 v15, v15, v9
v_add_u32 v15, {L_WPHI + 1600}, v15
v_mov_b32 v9, {L_ZERO}
v_cmp_eq_u32 vcc, v14, v11
s_lshl_b32 s39, s{S_RB}, 3
s_add_u32 s39, s39, s{S_WAVE}
s_lshl_b32 s39, s39, 5
s_lshl_b32 s40, s{S_HALF}, 4
s_add_u32 s39, s39, s40
s_lshl_b32 s40, s{S_QIDX}, 2
s_add_u32 s39, s39, s40
s_mul_i32 s39, s39, 1280
s_add_u32 s39, s39, {WS_PQ}
v_cndmask_b32 v15, v9, v15, vcc
v_mul_u32_u24 v11, 1280, v11
v_and_b32 v10, 15, v{V_LANE}
v_lshlrev_b32 v10, 4, v10
v_add_u32 v10, v10, v11
""")
    emit_project(a, PB, 15)
    OUTR = emit_softmax(a)
    for c in range(5):
        a(f"buffer_store_dwordx4 v[{OUTR+4*c}:{OUTR+4*c+3}], v10, s[{S_WS}:{S_WS+3}], s39 offen offset:{256*c}")
    a("K1_TAIL:")
    ST1.stamp(a, 'end', 13)
    ST1.flush(a, S_WS, WS_TS1, S_WAVE, "K1_TSF")
    a("s_branch K1_END")
    a("K1_PROD:")
    a(f"""
s_sub_u32 s38, s{S_WAVE}, 8          ; p
s_mul_i32 s72, s38, {640*(8//NPROD)}
s_mul_i32 s71, s38, {15360*(8//NPROD)}
""")
    a("s_mov_b32 exec_lo, -1")
    a("s_mov_b32 exec_hi, 0xff")
    a(f"s_and_b32 s46, s{S_RB}, 3")
    a(f"s_sub_u32 s47, s{S_WAVE}, 8")
    a("s_cmp_eq_u32 s46, s47")
    a("s_cselect_b32 s42, 1, 0")
    def issue_all(tag):
        for s in range(20):
            emit_wdma4(a, V_WKVO, s, L_WKV + 5120*s)
        a(f"s_cmp_eq_u32 s{S_LIGHT}, 0")
        a(f"s_cbranch_scc1 K1_PQ_{tag}")
        for q in range(7):
            emit_wdma4(a, V_WQO, q, wq_slot(q))
        a(f"K1_PQ_{tag}:")
    a("s_cmp_eq_u32 s42, 0")
    a("s_cbranch_scc1 K1_PNL")
    issue_all("L")
    a(f"s_waitcnt vmcnt({LWAITW})")
    a("s_barrier")
    a("s_branch K1_PJ")
    a("K1_PNL:")
    a("s_barrier")
    issue_all("F")
    a("K1_PJ:")
    a(f"s_cmp_eq_u32 s{S_LIGHT}, 0")
    a("s_cbranch_scc1 K1_PROD_H")
    for b in range(5):
        ng = 8 // NPROD
        younger = ng*(19 - (4*b+3)) + 7*ng
        if b >= 1: younger += 3*ng
        if b >= 2: younger += 4*ng * (b - 1)
        if b == 4: younger -= 2*ng
        a(f"s_waitcnt vmcnt({min(younger, 63)})")
        a("s_barrier")
        lst = [7, 8, 9] if b == 0 else [x for x in range(10 + 4*(b-1), 10 + 4*b) if x < 20]
        for q in lst:
            emit_wdma4(a, V_WQO, q, wq_slot(q))
    a("s_barrier")
    a("s_barrier")
    a("s_waitcnt vmcnt(0)")
    a("s_barrier")
    a("s_branch K1_PROD_WO")
    a("K1_PROD_H:")
    for b in range(5):
        younger = (8//NPROD)*(19 - (4*b+3))
        a(f"s_waitcnt vmcnt({min(younger, 63)})")
        a("s_barrier")
    a("s_barrier")
    a("s_barrier")
    a("K1_PROD_WO:")
    a("s_mov_b64 exec, -1")
    a(f"""
s_cmp_ge_u32 s2, 100
s_cbranch_scc1 K1_END
v_and_b32 v10, 31, v{V_LANE}
v_lshrrev_b32 v11, 2, v10
v_and_b32 v11, 1, v11
v_lshlrev_b32 v11, 4, v11
v_lshrrev_b32 v12, 3, v10
v_lshlrev_b32 v12, 2, v12
v_and_b32 v13, 3, v10
v_add3_u32 v11, v11, v12, v13
v_lshlrev_b32 v11, 1, v11
v_lshrrev_b32 v12, 5, v{V_LANE}
v_mul_u32_u24 v12, 12800, v12
v_add_u32 v11, v11, v12
v_lshlrev_b32 v14, 4, v{V_LANE}
s_sub_u32 s38, s{S_WAVE}, 8
s_mul_i32 s38, s38, {8//NPROD}
s_lshl_b32 s39, s2, 3
s_add_u32 s38, s38, s39
""")
    for i in range(8//NPROD):
        a(f"""
s_add_u32 s47, s38, {i}
s_mul_i32 s39, s47, 1639
s_lshr_b32 s39, s39, 16                ; nu
s_mul_i32 s40, s39, 40
s_sub_u32 s40, s47, s40                ; kappa
s_mul_i32 s41, s40, 205
s_lshr_b32 s41, s41, 10                ; w'
s_mul_i32 s42, s41, 5
s_sub_u32 s42, s40, s42                ; s5
s_mul_i32 s43, s41, 80
s_lshl_b32 s64, s42, 3
s_lshl_b32 s65, s39, 6
""")
        for j in range(8):
            a(f"""
s_add_u32 s66, s64, {j}
s_mul_i32 s67, s66, 205
s_lshr_b32 s67, s67, 11
s_mul_i32 s67, s67, 10
s_add_u32 s66, s66, s67
s_add_u32 s66, s66, s43
s_mul_i32 s66, s66, 1280
s_add_u32 s66, s66, s65
buffer_load_ushort v{16+8*i+j}, v11, s[{S_WO}:{S_WO+3}], s66 offen
""")
    a("s_waitcnt vmcnt(0)")
    for i in range(8//NPROD):
        for q in range(4):
            a(f"v_lshl_or_b32 v{48+4*i+q}, v{17+8*i+2*q}, 16, v{16+8*i+2*q}")
        a(f"s_add_u32 s47, s38, {i}")
        a(f"s_lshl_b32 s47, s47, 10")
        a(f"s_add_u32 s47, s47, {WS_WOP}")
        a(f"buffer_store_dwordx4 v[{48+4*i}:{48+4*i+3}], v14, s[{S_WS}:{S_WS+3}], s47 offen")
    a("K1_END:")
    a("s_endpgm")
    return a.text()
```

```python
from common import *
K2_GRID = 208
K2_LDS = 114688
K2_VGPR = 256
NAUX = 48
S_X, S_WS, S_DBG, S_OUT, S_G, S_U, S_D = 4, 8, 12, 16, 20, 24, 28
S_WAVE, S_RBK, S_CB, S_IDX, S_KEY = 32, 33, 34, 35, 36
V_LANE = 1
OPK = 16
KVP = 26
PQB = 74
DAC = 170
KVA = 170
def WOF_(k):
    return 202 + 4*k if k < 13 else 74 + 4*(k-13)
L_OF = 0
L_RED = 81920

ST2 = Stamper(0, 7, regs=[72,74,76,78,96,98,100])
def gen_k2():
    a = Asm()
    a.lines.append(kstart("k2_kernel"))
    ST2.stamp(a, "entry", 0)
    a(f"""
s_cmp_ge_u32 s2, {K2_GRID}
s_cbranch_scc1 K2_END
s_load_dwordx2 s[48:49], s[0:1], 0
s_load_dwordx4 s[52:55], s[0:1], 48
s_load_dwordx4 s[56:59], s[0:1], 64
s_load_dwordx4 s[60:63], s[0:1], 80
v_and_b32 v{V_LANE}, 63, v0
v_lshrrev_b32 v10, 6, v0
s_nop 0
v_readfirstlane_b32 s{S_WAVE}, v10
s_waitcnt lgkmcnt(0)
s_mov_b32 s{S_X}, s48
s_mov_b32 s{S_X+1}, s49
s_mov_b32 s{S_X+2}, 2621440
s_mov_b32 s{S_X+3}, 0x20000
s_mov_b32 s{S_G}, s52
s_mov_b32 s{S_G+1}, s53
s_mov_b32 s{S_G+2}, 1966080
s_mov_b32 s{S_G+3}, 0x20000
s_mov_b32 s{S_U}, s54
s_mov_b32 s{S_U+1}, s55
s_mov_b32 s{S_U+2}, 1966080
s_mov_b32 s{S_U+3}, 0x20000
s_mov_b32 s{S_D}, s56
s_mov_b32 s{S_D+1}, s57
s_mov_b32 s{S_D+2}, 1966080
s_mov_b32 s{S_D+3}, 0x20000
s_mov_b32 s{S_OUT}, s58
s_mov_b32 s{S_OUT+1}, s59
s_mov_b32 s{S_OUT+2}, 2621440
s_mov_b32 s{S_OUT+3}, 0x20000
s_mov_b32 s{S_DBG}, s60
s_mov_b32 s{S_DBG+1}, s61
s_mov_b32 s{S_DBG+2}, 256
s_mov_b32 s{S_DBG+3}, 0x20000
s_mov_b32 s{S_WS}, s62
s_mov_b32 s{S_WS+1}, s63
s_mov_b32 s{S_WS+2}, {WS_BYTES}
s_mov_b32 s{S_WS+3}, 0x20000
s_add_u32 s64, s62, {WS_AMAX}
s_addc_u32 s65, s63, 0
s_load_dwordx16 s[80:95], s[64:65], 0
s_cmp_lt_u32 s2, {NAUX}
s_cbranch_scc1 K2_AUX
""")
    gen_main(a)
    a("K2_AUX:")
    gen_aux(a)
    a("K2_END:")
    a("s_endpgm")
    return a.text()

def emit_idx(a):
    a("s_waitcnt lgkmcnt(0)")
    a("s_max_u32 s80, s80, s81")
    for i in range(82, 96):
        a(f"s_max_u32 s80, s80, s{i}")
    a(f"s_mov_b32 s{S_KEY}, s80")
    a("s_and_b32 s81, s80, 0x7ff")
    a(f"s_sub_u32 s{S_IDX}, 2047, s81")

def gen_main(a):
    a(f"""
s_sub_u32 s38, s2, {NAUX}
s_and_b32 s39, s38, 7           ; xcd
s_lshr_b32 s40, s38, 3          ; j 0..19
s_and_b32 s41, s40, 3
s_lshl_b32 s39, s39, 2
s_add_u32 s{S_RBK}, s39, s41
s_lshr_b32 s{S_CB}, s40, 2
; ---- addresses ----
v_and_b32 v10, 31, v{V_LANE}
v_lshrrev_b32 v11, 3, v10
v_lshlrev_b32 v11, 2, v11
v_and_b32 v12, 3, v10
v_add_u32 v11, v11, v12          ; q'
v_bfe_u32 v12, v10, 2, 1
v_mul_u32_u24 v12, 10, v12
v_add_u32 v12, v12, v11
v_mov_b32 v13, 20
v_cmp_gt_u32 vcc, 10, v11
s_nop 1
v_cndmask_b32 v12, v13, v12, vcc ; r
v_mul_u32_u24 v12, 160, v12
v_lshrrev_b32 v13, 5, v{V_LANE}  ; hf
v_lshlrev_b32 v14, 5, v13
v_add_u32 v2, v12, v14
v_mov_b32 v3, v12
v_bfe_u32 v11, v10, 4, 1
v_mul_u32_u24 v11, 40960, v11
v_lshlrev_b32 v14, 8, v13
v_and_b32 v15, 15, v10
v_lshlrev_b32 v15, 4, v15
v_add3_u32 v4, v11, v14, v15
s_lshl_b32 s42, s{S_WAVE}, 2              ; head0 = 4w
s_mul_i32 s43, s42, 3360
s_lshl_b32 s44, s{S_RBK}, 2               ; tt0
s_lshl_b32 s44, s44, 5
s_add_u32 s44, s44, s42
s_mul_i32 s44, s44, 1280
s_add_u32 s44, s44, {WS_PQ}
s_and_b32 s45, s{S_WAVE}, 3               ; nu
s_lshr_b32 s46, s{S_WAVE}, 2              ; eta
s_lshl_b32 s47, s{S_CB}, 2
s_add_u32 s47, s47, s45
s_mul_i32 s47, s47, 40
s_mul_i32 s66, s46, 20
s_add_u32 s47, s47, s66
s_lshl_b32 s47, s47, 10
s_add_u32 s47, s47, {WS_WOP}
v_lshlrev_b32 v5, 4, v{V_LANE}
""")
    def load_pq(h):
        pb = PQB + 24*h
        a(f"s_add_u32 s66, s44, {1280*h}")
        a(f"s_add_u32 s67, s66, {2*40960}")
        for tau in range(2):
            sb = "s66" if tau == 0 else "s67"
            for s in range(3):
                r = pb + 12*tau + 4*s
                if s == 2:
                    for j in range(4):
                        a(f"v_mov_b32 v{r+j}, 0")
                    a("s_mov_b32 exec_hi, 0")
                a(f"buffer_load_dwordx4 v[{r}:{r+3}], v4, s[{S_WS}:{S_WS+3}], {sb} offen offset:{512*s}")
                if s == 2:
                    a("s_mov_b32 exec_hi, -1")
    a(f"""
s_add_u32 s66, s43, {WS_KVACC}
v_lshlrev_b32 v9, 4, v{V_LANE}
s_mov_b32 m0, s43
""")
    for i in range(14):
        if i == 13:
            a("s_mov_b64 exec, 0xff")
        a(f"buffer_load_dwordx4 v9, s[{S_WS}:{S_WS+3}], s66 offen lds")
        if i < 13:
            a(f"s_add_u32 m0, m0, 1024")
            a(f"s_add_u32 s66, s66, 1024")
    a("s_mov_b64 exec, -1")
    for h in range(4):
        load_pq(h)
    a("s_barrier")
    def load_wo(k):
        a(f"s_add_u32 s67, s47, {4096*(k//4)}")
        a(f"buffer_load_dwordx4 v[{WOF_(k)}:{WOF_(k)+3}], v5, s[{S_WS}:{S_WS+3}], s67 offen offset:{1024*(k%4)}")
    for k in range(13):
        load_wo(k)
    a(f"""
s_mul_i32 s66, s{S_WAVE}, 10240
v_lshlrev_b32 v6, 4, v{V_LANE}
v_add_u32 v6, s66, v6
s_mov_b32 s68, 0x358637bd      ; 1e-6
v_add_u32 v2, s43, v2
v_add_u32 v3, s43, v3
""")
    ST2.stamp(a, 'issued', 1)
    a("s_waitcnt vmcnt(37)")
    for h in range(4):
        kb = KVA
        for s_ in range(3):
            vo = 2 if s_ < 2 else 3
            a(f"ds_read_b128 v[{kb+8*s_}:{kb+8*s_+3}], v{vo} offset:{3360*h + 64*s_}")
            a(f"ds_read_b128 v[{kb+8*s_+4}:{kb+8*s_+7}], v{vo} offset:{3360*h + 64*s_ + 16}")
        a("s_waitcnt lgkmcnt(0)")
        for i in range(12):
            a(f"v_cvt_pk_bf16_f32 v{KVP+12*h+i}, v{kb+2*i}, v{kb+2*i+1}")
    a("s_barrier")
    for h in range(4):
        pb = PQB + 24*h
        a(f"s_waitcnt vmcnt({[31,25,26,20][h]})")
        for tau in range(2):
            for s_ in range(3):
                c = f"v[{DAC+16*tau}:{DAC+16*tau+15}]" if s_ > 0 else "0"
                a(f"v_mfma_f32_32x32x16_bf16 v[{DAC+16*tau}:{DAC+16*tau+15}], v[{KVP+12*h+4*s_}:{KVP+12*h+4*s_+3}], v[{pb+12*tau+4*s_}:{pb+12*tau+4*s_+3}], {c}")
        if h == 1:
            for k in range(13, 20):
                load_wo(k)
        a("s_nop 7")
        a("s_nop 3")
        for tau in range(2):
            d = DAC + 16*tau
            a(f"v_cvt_pk_bf16_f32 v10, v{d+10}, v{d+10}")
            a(f"v_and_b32 v10, 0xffff0000, v10")
            a(f"v_add_f32 v10, s68, v10")
            a(f"v_cvt_pk_bf16_f32 v10, v10, v10")
            a(f"v_and_b32 v10, 0xffff0000, v10")
            a(f"v_rcp_f32 v10, v10")
            for i in range(5):
                a(f"v_cvt_pk_bf16_f32 v{OPK+i}, v{d+2*i}, v{d+2*i+1}")
            for i in range(5):
                a(f"v_lshlrev_b32 v{d+2*i}, 16, v{OPK+i}")
                a(f"v_and_b32 v{d+2*i+1}, 0xffff0000, v{OPK+i}")
            for i in range(10):
                a(f"v_mul_f32 v{d+i}, v{d+i}, v10")
            for i in range(5):
                a(f"v_cvt_pk_bf16_f32 v{OPK+5+i}, v{d+2*i}, v{d+2*i+1}")
            for i in range(5):
                rho = 5*h + i
                a(f"ds_write_b32 v6, v{OPK+5+i} offset:{((rho//4)*2+tau)*1024 + 4*(rho%4)}")
    ST2.stamp(a, 'ophase', 2)
    XR, ST = 26, 34
    a(f"""
s_lshl_b32 s66, s{S_RBK}, 6
s_lshl_b32 s67, s46, 5
s_add_u32 s66, s66, s67
v_and_b32 v10, 31, v{V_LANE}
v_add_u32 v10, s66, v10                ; token
v_lshlrev_b32 v11, 3, v10
s_mov_b32 s67, {WS_STATS}
buffer_load_dwordx2 v[{ST}:{ST+1}], v11, s[{S_WS}:{S_WS+3}], s67 offen
s_movk_i32 s67, 1280
v_mul_lo_u32 v7, v10, s67
s_lshl_b32 s67, s{S_CB}, 8
s_lshl_b32 s69, s45, 6
s_add_u32 s67, s67, s69
v_lshrrev_b32 v11, 5, v{V_LANE}
v_lshlrev_b32 v11, 5, v11
v_add3_u32 v7, v7, v11, s67
buffer_load_dwordx4 v[{XR}:{XR+3}], v7, s[{S_X}:{S_X+3}], 0 offen
buffer_load_dwordx4 v[{XR+4}:{XR+7}], v7, s[{S_X}:{S_X+3}], 0 offen offset:16
v_mov_b32 v8, v10
s_waitcnt vmcnt(3) lgkmcnt(0)
s_barrier
s_mul_i32 s66, s46, 40960
v_lshlrev_b32 v6, 4, v{V_LANE}
v_add_u32 v6, s66, v6
""")
    BF = 36
    def rd(k, buf):
        a(f"ds_read_b128 v[{BF+8*buf}:{BF+8*buf+3}], v6 offset:{2048*k}")
        a(f"ds_read_b128 v[{BF+8*buf+4}:{BF+8*buf+7}], v6 offset:{2048*k+1024}")
    rd(0, 0)
    for k in range(20):
        if k < 19:
            rd(k+1, (k+1)&1)
            a("s_waitcnt lgkmcnt(2)")
        else:
            a("s_waitcnt lgkmcnt(0)")
        b = BF + 8*(k&1)
        for tau in range(2):
            c = f"v[{DAC+16*tau}:{DAC+16*tau+15}]" if k > 0 else "0"
            a(f"v_mfma_f32_32x32x16_bf16 v[{DAC+16*tau}:{DAC+16*tau+15}], v[{WOF_(k)}:{WOF_(k)+3}], v[{b+4*tau}:{b+4*tau+3}], {c}")
    ST2.stamp(a, 'gemm', 3)
    a(f"""
s_nop 7
s_nop 3
s_lshl_b32 s66, s{S_WAVE}, 12
s_add_u32 s66, s66, {L_RED}
v_lshlrev_b32 v6, 4, v{V_LANE}
v_add_u32 v6, s66, v6
s_xor_b32 s67, s{S_WAVE}, 4
s_lshl_b32 s67, s67, 12
s_add_u32 s67, s67, {L_RED}
v_lshlrev_b32 v9, 4, v{V_LANE}
v_add_u32 v9, s67, v9
s_cmp_eq_u32 s46, 0
s_cbranch_scc0 K2_ETA1
""")
    for q in range(4):
        a(f"ds_write_b128 v6, v[{DAC+16+4*q}:{DAC+16+4*q+3}] offset:{1024*q}")
    a("s_branch K2_ETA_J")
    a("K2_ETA1:")
    for q in range(4):
        a(f"ds_write_b128 v6, v[{DAC+4*q}:{DAC+4*q+3}] offset:{1024*q}")
    for q in range(16):
        a(f"v_mov_b32 v{DAC+q}, v{DAC+16+q}")
    a("K2_ETA_J:")
    a("s_waitcnt lgkmcnt(0)")
    a("s_barrier")
    RD = 52
    for q in range(4):
        a(f"ds_read_b128 v[{RD+4*q}:{RD+4*q+3}], v9 offset:{1024*q}")
    emit_idx(a)
    for q in range(16):
        a(f"v_add_f32 v{DAC+q}, v{DAC+q}, v{RD+q}")
    Y = 120
    for q in range(16):
        a(f"v_mov_b32 v{Y+q}, 0")
    a(f"""
s_lshl_b32 s66, s{S_RBK}, 6
s_lshl_b32 s67, s46, 5
s_add_u32 s66, s66, s67
s_sub_u32 s67, s{S_IDX}, s66
s_cmp_ge_u32 s67, 32
s_cbranch_scc1 K2_NOOWN
v_mov_b32 v10, 0
K2_POLL:
buffer_load_dword v11, v10, s[{S_DBG}:{S_DBG+3}], 0 offen sc0 sc1
s_waitcnt vmcnt(0)
s_nop 0
v_readfirstlane_b32 s69, v11
s_nop 3
s_cmp_ge_u32 s69, {NAUX}
s_cbranch_scc1 K2_POLLED
s_sleep 2
s_branch K2_POLL
K2_POLLED:
v_and_b32 v10, 31, v{V_LANE}
v_lshlrev_b32 v10, 2, v10
v_lshrrev_b32 v11, 5, v{V_LANE}
v_mul_u32_u24 v11, 61440, v11
v_add_u32 v10, v10, v11
s_lshl_b32 s69, s{S_CB}, 9
s_lshl_b32 s70, s45, 7
s_add_u32 s69, s69, s70
s_add_u32 s69, s69, {WS_YPART}
""")
    for p in range(24):
        a(f"s_add_u32 s70, s69, {2560*p}")
        a(f"buffer_load_dword v{80+p}, v10, s[{S_WS}:{S_WS+3}], s70 offen sc0 sc1")
    a("s_waitcnt vmcnt(0)")
    for p in range(1, 24):
        a(f"v_add_f32 v80, v80, v{80+p}")
    a(f"""
v_mov_b32 v81, v80
s_nop 1
v_permlane32_swap_b32 v80, v81
s_nop 1
v_add_f32 v80, v80, v81
v_cvt_pk_bf16_f32 v80, v80, v80
v_and_b32 v80, 0xffff0000, v80
; r_sel
s_and_b32 s69, s{S_KEY}, 0xffff0000
s_xor_b32 s70, s69, 0x80000000
s_not_b32 s71, s69
s_and_b32 s71, s71, 0xffff0000
s_cmp_lt_i32 s69, 0
s_cselect_b32 s69, s70, s71         ; r bits
v_mov_b32 v81, s69
v_mul_f32 v81, 0xbfb8aa3b, v81
v_exp_f32 v81, v81
s_nop 0
v_add_f32 v81, 1.0, v81
v_rcp_f32 v81, v81
s_nop 0
v_cvt_pk_bf16_f32 v81, v81, v81
v_and_b32 v81, 0xffff0000, v81
v_mul_f32 v80, v80, v81
v_cvt_pk_bf16_f32 v80, v80, v80
v_and_b32 v80, 0xffff0000, v80
s_lshl_b32 s69, s{S_WAVE}, 8
v_and_b32 v10, 31, v{V_LANE}
v_lshlrev_b32 v10, 2, v10
v_add_u32 v10, s69, v10
ds_write_b32 v10, v80
v_lshrrev_b32 v11, 5, v{V_LANE}
v_lshlrev_b32 v11, 6, v11
v_add_u32 v11, s69, v11
s_waitcnt lgkmcnt(0)
ds_read_b128 v[{Y}:{Y+3}], v11
ds_read_b128 v[{Y+4}:{Y+7}], v11 offset:16
ds_read_b128 v[{Y+8}:{Y+11}], v11 offset:32
ds_read_b128 v[{Y+12}:{Y+15}], v11 offset:48
s_waitcnt lgkmcnt(0)
v_cmp_eq_u32 vcc, s{S_IDX}, v8
s_nop 1
""")
    for q in range(16):
        a(f"v_cndmask_b32 v{Y+q}, 0, v{Y+q}, vcc")
    a("K2_NOOWN:")
    ST2.stamp(a, 'moe', 4)
    a("s_waitcnt vmcnt(0)")
    T = 140
    a(f"v_sub_f32 v{T+20}, 0, v{ST}")
    for q in range(8):
        xr = XR + q
        x0, x1 = T, T+1
        a(f"v_lshlrev_b32 v{x0}, 16, v{xr}")
        a(f"v_and_b32 v{x1}, 0xffff0000, v{xr}")
        a(f"v_cvt_pk_bf16_f32 v{T+2}, v{DAC+2*q}, v{DAC+2*q+1}")
        a(f"v_lshlrev_b32 v{T+3}, 16, v{T+2}")
        a(f"v_and_b32 v{T+4}, 0xffff0000, v{T+2}")
        a(f"v_add_f32 v{T+3}, v{x0}, v{T+3}")
        a(f"v_add_f32 v{T+4}, v{x1}, v{T+4}")
        a(f"v_cvt_pk_bf16_f32 v{T+2}, v{T+3}, v{T+4}")
        a(f"v_lshlrev_b32 v{T+3}, 16, v{T+2}")
        a(f"v_and_b32 v{T+4}, 0xffff0000, v{T+2}")
        a(f"v_add_f32 v{x0}, v{x0}, v{T+20}")
        a(f"v_add_f32 v{x1}, v{x1}, v{T+20}")
        a(f"v_cvt_pk_bf16_f32 v{T+5}, v{x0}, v{x1}")
        a(f"v_lshlrev_b32 v{x0}, 16, v{T+5}")
        a(f"v_and_b32 v{x1}, 0xffff0000, v{T+5}")
        a(f"v_mul_f32 v{x0}, v{x0}, v{ST+1}")
        a(f"v_mul_f32 v{x1}, v{x1}, v{ST+1}")
        a(f"v_cvt_pk_bf16_f32 v{T+5}, v{x0}, v{x1}")
        a(f"v_lshlrev_b32 v{x0}, 16, v{T+5}")
        a(f"v_and_b32 v{x1}, 0xffff0000, v{T+5}")
        a(f"v_add_f32 v{x0}, v{x0}, v{Y+2*q}")
        a(f"v_add_f32 v{x1}, v{x1}, v{Y+2*q+1}")
        a(f"v_cvt_pk_bf16_f32 v{T+5}, v{x0}, v{x1}")
        a(f"v_lshlrev_b32 v{x0}, 16, v{T+5}")
        a(f"v_and_b32 v{x1}, 0xffff0000, v{T+5}")
        a(f"v_add_f32 v{x0}, v{x0}, v{T+3}")
        a(f"v_add_f32 v{x1}, v{x1}, v{T+4}")
        a(f"v_cvt_pk_bf16_f32 v{T+8+q}, v{x0}, v{x1}")
    a(f"buffer_store_dwordx4 v[{T+8}:{T+11}], v7, s[{S_OUT}:{S_OUT+3}], 0 offen")
    a(f"buffer_store_dwordx4 v[{T+12}:{T+15}], v7, s[{S_OUT}:{S_OUT+3}], 0 offen offset:16")
    ST2.stamp(a, 'end', 5)
    ST2.flush(a, S_WS, WS_TS2, S_WAVE, "K2_TSF_M")
    a("s_branch K2_END")

def gen_aux(a):
    GW, UW, DW = 16, 36, 56
    L_XN, L_P, L_H, L_Y = 0, 4096, 8192, 12288
    a(f"""
v_lshrrev_b32 v10, 2, v0
s_movk_i32 s38, 3072
v_mul_lo_u32 v11, v10, s38
v_and_b32 v12, 3, v0
v_lshlrev_b32 v12, 4, v12
s_lshl_b32 s39, s2, 6
v_add3_u32 v2, v11, v12, s39
""")
    for i in range(5):
        a(f"s_mov_b32 s40, {i*128*3072}")
        a(f"buffer_load_dwordx4 v[{GW+4*i}:{GW+4*i+3}], v2, s[{S_G}:{S_G+3}], s40 offen")
        a(f"buffer_load_dwordx4 v[{UW+4*i}:{UW+4*i+3}], v2, s[{S_U}:{S_U+3}], s40 offen")
    a(f"""
; down: t<320: chunk = t%80 ; rgd = t/80 ; rows 32a + 8 rgd + i
v_mul_u32_u24 v11, 205, v0
v_lshrrev_b32 v11, 14, v11          ; t/80 (205/16384=0.012512) 
v_mul_u32_u24 v12, 80, v11
v_sub_u32 v12, v0, v12              ; chunk
v_lshlrev_b32 v13, 3, v11
s_lshl_b32 s39, s2, 5
v_add_u32 v13, s39, v13             ; row0
s_movk_i32 s38, 1280
v_mul_lo_u32 v13, v13, s38
v_lshlrev_b32 v14, 4, v12
v_add_u32 v3, v13, v14
v_mov_b32 v4, v11                   ; rgd
v_mov_b32 v5, v12                   ; chunk
s_cmp_ge_u32 s{S_WAVE}, 5
s_cbranch_scc1 K2A_NODL
""")
    for i in range(8):
        a(f"buffer_load_dwordx4 v[{DW+4*i}:{DW+4*i+3}], v3, s[{S_D}:{S_D+3}], 0 offen offset:{1280*(i%3)}" if False else
          f"s_mov_b32 s40, {1280*i}\nbuffer_load_dwordx4 v[{DW+4*i}:{DW+4*i+3}], v3, s[{S_D}:{S_D+3}], s40 offen")
    a("K2A_NODL:")
    ST2.stamp(a, 'issued', 1)
    emit_idx(a)
    ST2.stamp(a, 'idx', 2)
    a(f"""
s_cmp_ge_u32 s{S_WAVE}, 2
s_cbranch_scc1 K2A_NOX
s_mul_i32 s38, s{S_IDX}, 1280
v_lshlrev_b32 v10, 4, v0
s_lshl_b32 s39, s{S_IDX}, 3
s_add_u32 s39, s39, {WS_STATS}
v_mov_b32 v11, 0
buffer_load_dwordx4 v[96:99], v10, s[{S_X}:{S_X+3}], s38 offen
buffer_load_dwordx2 v[100:101], v11, s[{S_WS}:{S_WS+3}], s39 offen
s_waitcnt vmcnt(0)
v_sub_f32 v102, 0, v100
""")
    for q in range(4):
        a(f"v_lshlrev_b32 v{104+2*q}, 16, v{96+q}")
        a(f"v_and_b32 v{105+2*q}, 0xffff0000, v{96+q}")
    for q in range(8):
        a(f"v_add_f32 v{104+q}, v{104+q}, v102")
    for q in range(4):
        a(f"v_cvt_pk_bf16_f32 v{96+q}, v{104+2*q}, v{105+2*q}")
    for q in range(4):
        a(f"v_lshlrev_b32 v{104+2*q}, 16, v{96+q}")
        a(f"v_and_b32 v{105+2*q}, 0xffff0000, v{96+q}")
    for q in range(8):
        a(f"v_mul_f32 v{104+q}, v{104+q}, v101")
    for q in range(4):
        a(f"v_cvt_pk_bf16_f32 v{96+q}, v{104+2*q}, v{105+2*q}")
    for q in range(4):
        a(f"v_lshlrev_b32 v{104+2*q}, 16, v{96+q}")
        a(f"v_and_b32 v{105+2*q}, 0xffff0000, v{96+q}")
    a(f"""
v_lshlrev_b32 v10, 5, v0
v_cmp_gt_u32 vcc, 80, v0
s_and_saveexec_b64 s[64:65], vcc
ds_write_b128 v10, v[104:107] offset:{L_XN}
ds_write_b128 v10, v[108:111] offset:{L_XN+16}
s_mov_b64 exec, s[64:65]
K2A_NOX:
s_waitcnt vmcnt(0) lgkmcnt(0)
s_barrier
""")
    ST2.stamp(a, 'xn', 3)
    a(f"""
v_lshrrev_b32 v10, 2, v0
v_lshlrev_b32 v10, 2, v10          ; rg*4
""")
    for i in range(5):
        a(f"ds_read_b32 v{96+i}, v10 offset:{L_XN + 512*i}")
    AG, AU = 104, 112
    for q in range(16):
        a(f"v_mov_b32 v{AG+q}, 0")
    a("s_waitcnt lgkmcnt(0)")
    for i in range(5):
        for (W, A) in ((GW, AG), (UW, AU)):
            for q in range(4):
                a(f"v_lshlrev_b32 v120, 16, v{W+4*i+q}")
                a(f"v_and_b32 v121, 0xffff0000, v{W+4*i+q}")
                a(f"v_fmac_f32 v{A+2*q}, v120, v{96+i}")
                a(f"v_fmac_f32 v{A+2*q+1}, v121, v{96+i}")
    for q in range(16):
        a("s_nop 1")
        a(f"v_add_f32_dpp v{AG+q}, v{AG+q}, v{AG+q} row_ror:4 row_mask:0xf bank_mask:0xf")
    for q in range(16):
        a("s_nop 1")
        a(f"v_add_f32_dpp v{AG+q}, v{AG+q}, v{AG+q} row_ror:8 row_mask:0xf bank_mask:0xf")
    for sw in ("v_permlane16_swap_b32", "v_permlane32_swap_b32"):
        for q in range(16):
            a(f"v_mov_b32 v{124+q}, v{AG+q}")
        a("s_nop 1")
        for q in range(16):
            a(f"{sw} v{AG+q}, v{124+q}")
        a("s_nop 1")
        for q in range(16):
            a(f"v_add_f32 v{AG+q}, v{AG+q}, v{124+q}")
    a(f"""
s_lshl_b32 s38, s{S_WAVE}, 8
v_lshlrev_b32 v10, 5, v{V_LANE}
v_add_u32 v10, s38, v10
s_mov_b64 exec, 0xf
ds_write_b128 v10, v[{AG}:{AG+3}] offset:{L_P}
ds_write_b128 v10, v[{AG+4}:{AG+7}] offset:{L_P+16}
ds_write_b128 v10, v[{AU}:{AU+3}] offset:{L_P+128}
ds_write_b128 v10, v[{AU+4}:{AU+7}] offset:{L_P+144}
s_mov_b64 exec, -1
s_waitcnt lgkmcnt(0)
s_barrier
s_cmp_lg_u32 s{S_WAVE}, 0
s_cbranch_scc1 K2A_NOH
v_and_b32 v10, 31, v{V_LANE}
v_lshlrev_b32 v10, 2, v10
""")
    for w in range(8):
        a(f"ds_read_b32 v{96+w}, v10 offset:{L_P + 256*w}")
        a(f"ds_read_b32 v{104+w}, v10 offset:{L_P + 256*w + 128}")
    a("s_waitcnt lgkmcnt(0)")
    for w in range(1, 8):
        a(f"v_add_f32 v96, v96, v{96+w}")
        a(f"v_add_f32 v104, v104, v{104+w}")
    a(f"""
v_cvt_pk_bf16_f32 v97, v96, v104
v_lshlrev_b32 v96, 16, v97            ; g_b
v_and_b32 v104, 0xffff0000, v97       ; u_b
v_mul_f32 v98, 0xbfb8aa3b, v96
v_exp_f32 v98, v98
s_nop 0
v_add_f32 v98, 1.0, v98
v_rcp_f32 v98, v98
s_nop 0
v_mul_f32 v98, v96, v98               ; silu
v_cvt_pk_bf16_f32 v98, v98, v98
v_and_b32 v98, 0xffff0000, v98
v_mul_f32 v98, v98, v104
v_cvt_pk_bf16_f32 v98, v98, v98
v_and_b32 v98, 0xffff0000, v98        ; h
s_mov_b32 exec_hi, 0
ds_write_b32 v10, v98 offset:{L_H}
s_mov_b64 exec, -1
K2A_NOH:
s_waitcnt lgkmcnt(0)
s_barrier
""")
    ST2.stamp(a, 'h', 4)
    a(f"""
s_cmp_ge_u32 s{S_WAVE}, 5
s_cbranch_scc1 K2A_NOD
v_lshlrev_b32 v10, 5, v4             ; rgd*8*4
ds_read_b128 v[96:99], v10 offset:{L_H}
ds_read_b128 v[100:103], v10 offset:{L_H+16}
""")
    for q in range(8):
        a(f"v_mov_b32 v{104+q}, 0")
    a("s_waitcnt lgkmcnt(0)")
    for i in range(8):
        for q in range(4):
            a(f"v_lshlrev_b32 v120, 16, v{DW+4*i+q}")
            a(f"v_and_b32 v121, 0xffff0000, v{DW+4*i+q}")
            a(f"v_fmac_f32 v{104+2*q}, v120, v{96+i}")
            a(f"v_fmac_f32 v{105+2*q}, v121, v{96+i}")
    a(f"""
v_mul_u32_u24 v10, 2560, v4
v_lshlrev_b32 v11, 5, v5
v_add_u32 v10, v10, v11
ds_write_b128 v10, v[104:107] offset:{L_Y}
ds_write_b128 v10, v[108:111] offset:{L_Y+16}
K2A_NOD:
s_waitcnt lgkmcnt(0)
s_barrier
s_cmp_ge_u32 s{S_WAVE}, 3
s_cbranch_scc1 K2A_NOS
v_lshlrev_b32 v10, 4, v0
ds_read_b128 v[96:99], v10 offset:{L_Y}
ds_read_b128 v[100:103], v10 offset:{L_Y+2560}
ds_read_b128 v[104:107], v10 offset:{L_Y+5120}
ds_read_b128 v[108:111], v10 offset:{L_Y+7680}
s_waitcnt lgkmcnt(0)
""")
    for q in range(4):
        a(f"v_add_f32 v{96+q}, v{96+q}, v{100+q}")
        a(f"v_add_f32 v{104+q}, v{104+q}, v{108+q}")
        a(f"v_add_f32 v{96+q}, v{96+q}, v{104+q}")
    a(f"""
s_mul_i32 s38, s2, 2560
s_add_u32 s38, s38, {WS_YPART}
v_cmp_gt_u32 vcc, 160, v0
s_and_saveexec_b64 s[64:65], vcc
buffer_store_dwordx4 v[96:99], v10, s[{S_WS}:{S_WS+3}], s38 offen sc0 sc1
s_mov_b64 exec, s[64:65]
s_waitcnt vmcnt(0)
K2A_NOS:
s_barrier
s_cmp_lg_u32 s{S_WAVE}, 0
s_cbranch_scc1 K2_END
v_mov_b32 v10, 0
v_mov_b32 v11, 1
s_mov_b64 exec, 1
buffer_atomic_add v11, v10, s[{S_DBG}:{S_DBG+3}], 0 offen
s_mov_b64 exec, -1
""")
    ST2.stamp(a, 'end', 5)
    ST2.flush(a, S_WS, WS_TS2, S_WAVE, "K2_TSF_A")
    a("s_branch K2_END")
```

```python
class Asm:
    def __init__(self):
        self.lines = []
        self.lbl = 0
    def __call__(self, s):
        for ln in s.strip("\n").split("\n"):
            self.lines.append("    " + ln.strip() if ln.strip() and not ln.strip().endswith(":") else ln.strip())
    def label(self, name):
        self.lines.append(name + ":")
    def newlabel(self, prefix="L"):
        self.lbl += 1
        return f"{prefix}_{self.lbl}"
    def text(self):
        return "\n".join(self.lines) + "\n"

def vr(a, n=1):
    return f"v{a}" if n == 1 else f"v[{a}:{a+n-1}]"
def sr(a, n=1):
    return f"s{a}" if n == 1 else f"s[{a}:{a+n-1}]"

WS_KVACC = 0
WS_STATS = 0x20000
WS_AMAX  = 0x28000
WS_KEY   = 0x29000
WS_GU    = 0x2A000
WS_YPART = 0x30000
WS_WOP   = 0x100000
WS_PQ    = 0x200000
WS_XNF   = 0x800000
XNF_COPY = 655360
WS_WPF   = 0xC00000
WPF_COPY = 1228800
WS_BYTES = 0x10000000

def kdesc(name, vgpr, sgpr=102, accoff=None):
    acc = accoff if accoff else (vgpr + 3) // 4 * 4
    return f""".p2align 6
.amdhsa_kernel {name}
  .amdhsa_next_free_vgpr {vgpr}
  .amdhsa_next_free_sgpr {sgpr}
  .amdhsa_accum_offset {acc}
  .amdhsa_group_segment_fixed_size 0
  .amdhsa_kernarg_size 96
  .amdhsa_user_sgpr_count 2
  .amdhsa_user_sgpr_kernarg_segment_ptr 1
  .amdhsa_system_sgpr_workgroup_id_x 1
.end_amdhsa_kernel
"""
def kstart(name):
    return f".globl {name}\n.p2align 8\n.type {name},@function\n{name}:\n"

import os
STAMPS = os.environ.get("STAMPS", "0") == "1"
WS_TS1 = 0x8000000
WS_TS2 = 0x8100000
class Stamper:
    def __init__(self, first_sgpr, maxn, regs=None):
        self.first = first_sgpr; self.n = 0; self.maxn = maxn; self.names = []
        self.regs = regs if regs else [first_sgpr + 2*i for i in range(maxn)]
    def stamp(self, a, name, idx=None):
        if not STAMPS: return
        i = self.n if idx is None else idx
        if idx is None: self.n += 1
        assert i < self.maxn
        while len(self.names) <= i: self.names.append(None)
        self.names[i] = name
        a(f"s_memrealtime s[{self.regs[i]}:{self.regs[i]+1}]")
    def flush(self, a, ws_srd, base, wave_sgpr, lbl):
        if not STAMPS: return
        a(f"s_cmp_lg_u32 s{wave_sgpr}, 0")
        a(f"s_cbranch_scc1 {lbl}")
        a("s_waitcnt lgkmcnt(0)")
        a(f"s_lshl_b32 s38, s2, 7")
        a(f"s_add_u32 s38, s38, {base}")
        a("v_mov_b32 v10, 0")
        a("s_mov_b64 exec, 1")
        for i in range(self.maxn):
            a(f"v_mov_b32 v12, s{self.regs[i]}")
            a(f"v_mov_b32 v13, s{self.regs[i]+1}")
            a(f"buffer_store_dwordx2 v[12:13], v10, s[{ws_srd}:{ws_srd+3}], s38 offen offset:{8*i}")
            a("s_nop 1")
        a("s_mov_b64 exec, -1")
        a(f"{lbl}:")
```

```python
from common import *
K0_GRID = 256
K0_BLOCK = 320
K0_LDS = 16384
K0_VGPR = 64
S_X, S_W, S_WO, S_WR, S_WS = 4, 8, 12, 16, 20
S_WAVE = 32
def gen_k0():
    a = Asm()
    a.lines.append(kstart("k0_kernel"))
    a(f"""
s_cmp_ge_u32 s2, {K0_GRID}
s_cbranch_scc1 K0_END
s_load_dwordx4 s[48:51], s[0:1], 0
s_load_dwordx2 s[52:53], s[0:1], 24
s_load_dwordx2 s[54:55], s[0:1], 40
s_load_dwordx2 s[56:57], s[0:1], 88
s_load_dwordx4 s[24:27], s[0:1], 48
s_load_dwordx2 s[28:29], s[0:1], 64
v_and_b32 v1, 63, v0
v_lshrrev_b32 v10, 6, v0
s_nop 0
v_readfirstlane_b32 s{S_WAVE}, v10
s_waitcnt lgkmcnt(0)
s_mov_b32 s{S_X}, s48
s_mov_b32 s{S_X+1}, s49
s_mov_b32 s{S_X+2}, 2621440
s_mov_b32 s{S_X+3}, 0x20000
s_mov_b32 s{S_W}, s50
s_mov_b32 s{S_W+1}, s51
s_mov_b32 s{S_W+2}, 2457600
s_mov_b32 s{S_W+3}, 0x20000
s_mov_b32 s{S_WO}, s52
s_mov_b32 s{S_WO+1}, s53
s_mov_b32 s{S_WO+2}, 819200
s_mov_b32 s{S_WO+3}, 0x20000
s_mov_b32 s{S_WR}, s54
s_mov_b32 s{S_WR+1}, s55
s_mov_b32 s{S_WR+2}, 1280
s_mov_b32 s{S_WR+3}, 0x20000
s_mov_b32 s{S_WS}, s56
s_mov_b32 s{S_WS+1}, s57
s_mov_b32 s{S_WS+2}, {WS_BYTES}
s_mov_b32 s{S_WS+3}, 0x20000
s_and_b32 s34, s2, 7                  ; copy c
s_lshr_b32 s35, s2, 3                  ; j 0..31
s_cmp_lt_u32 s{S_WAVE}, 2
s_cbranch_scc1 K0_LN
s_cmp_eq_u32 s{S_WAVE}, 4
s_cbranch_scc1 K0_MISC
s_mov_b32 s38, s2
s_mov_b32 s39, 0
s_cmp_eq_u32 s{S_WAVE}, 2
s_cbranch_scc1 K0_WB
s_cmp_ge_u32 s2, 64
s_cbranch_scc1 K0_END
s_add_u32 s38, s2, 256
s_movk_i32 s39, 8192
K0_WB:
; block id s38 -> pair = id/20, s = id%20 ; LDS base s39
s_mul_i32 s40, s38, 3277
s_lshr_b32 s40, s40, 16          ; pair
s_mul_i32 s41, s40, 20
s_sub_u32 s41, s38, s41          ; s
s_mul_i32 s42, s41, {32*3840}
s_mul_i32 s43, s40, 80
s_add_u32 s42, s42, s43
""")
    for i in range(8):
        a(f"""
v_add_u32 v10, {64*i}, v1            ; sigma
v_mul_u32_u24 v11, 4370, v10
v_lshrrev_b32 v11, 16, v11
v_mul_u32_u24 v12, 15, v11
v_sub_u32 v12, v10, v12              ; cir
v_mul_u32_u24 v13, 13, v12
v_lshrrev_b32 v13, 6, v13
v_mul_u32_u24 v14, 5, v13
v_sub_u32 v14, v12, v14              ; c5
v_mul_u32_u24 v11, 3840, v11
v_mul_u32_u24 v13, 1280, v13
v_lshlrev_b32 v14, 4, v14
v_add3_u32 v11, v11, v13, v14
s_add_u32 m0, s39, {1024*i}
""")
        if i == 7:
            a("s_mov_b32 exec_hi, 0")
        a(f"buffer_load_dwordx4 v11, s[{S_W}:{S_W+3}], s42 offen lds")
    a(f"""
s_mov_b64 exec, -1
v_lshrrev_b32 v10, 4, v1
v_lshlrev_b32 v10, 3, v10
v_bfe_u32 v11, v1, 2, 2
v_add_u32 v10, v10, v11
v_mul_u32_u24 v10, 240, v10
v_add_u32 v10, s39, v10
v_and_b32 v11, 3, v1                 ; c
v_mul_u32_u24 v12, 40, v11
v_add_u32 v12, v12, v10              ; tiles 0-4: 40c (+8t)
v_lshrrev_b32 v13, 1, v11            ; u
v_mul_u32_u24 v13, 40, v13
v_and_b32 v14, 1, v11                ; g'
v_lshlrev_b32 v14, 3, v14
v_add3_u32 v13, v13, v14, v10
v_add_u32 v13, 160, v13              ; tiles 5,6: 160+40u+8g' (+16t')
v_lshrrev_b32 v14, 1, v11
v_mul_u32_u24 v14, 40, v14
v_add_u32 v14, v14, v10
v_add_u32 v14, 192, v14
s_mul_i32 s42, s38, 7680
s_add_u32 s42, s42, {WS_WPF}
v_lshlrev_b32 v15, 4, v1
v_lshrrev_b32 v16, 4, v1
v_lshlrev_b32 v16, 3, v16
v_bfe_u32 v17, v1, 3, 1
v_lshlrev_b32 v17, 2, v17
v_and_b32 v18, 3, v1
v_add3_u32 v16, v16, v17, v18
v_lshlrev_b32 v16, 4, v16
s_waitcnt vmcnt(0)
""")
    for t in range(8):
        r = 20 + 4*t
        if t < 5: va, off = 12, 8*t
        elif t < 7: va, off = 13, 16*(t-5)
        else: va, off = 14, 0
        a(f"ds_read_b64_tr_b16 v[{r}:{r+1}], v{va} offset:{off}")
        a(f"ds_read_b64_tr_b16 v[{r+2}:{r+3}], v{va} offset:{off + 960}")
    a("s_waitcnt lgkmcnt(0)")
    for t in range(7):
        a(f"buffer_store_dwordx4 v[{20+4*t}:{23+4*t}], v15, s[{S_WS}:{S_WS+3}], s42 offen offset:{1024*t}" if t < 4 else
          f"s_add_u32 s43, s42, {1024*t}\nbuffer_store_dwordx4 v[{20+4*t}:{23+4*t}], v15, s[{S_WS}:{S_WS+3}], s43 offen")
    a(f"""
s_add_u32 s43, s42, 7168
s_mov_b32 exec_lo, 0x0f0f0f0f
s_mov_b32 exec_hi, 0x0f0f0f0f
buffer_store_dwordx4 v[48:51], v16, s[{S_WS}:{S_WS+3}], s43 offen
s_branch K0_END
""")
    a(f"""
K0_MISC:
s_cmp_ge_u32 s2, 117
s_cbranch_scc1 K0_WO
s_lshl_b32 s38, s2, 6
v_add_u32 v10, s38, v1
v_lshlrev_b32 v11, 4, v10
v_add_u32 v12, {WS_GU - 107520}, v11
v_cmp_gt_u32 vcc, 6720, v10
s_nop 1
v_cndmask_b32 v11, v12, v11, vcc
v_mov_b32 v4, 0
v_mov_b32 v5, 0
v_mov_b32 v6, 0
v_mov_b32 v7, 0
buffer_store_dwordx4 v[4:7], v11, s[{S_WS}:{S_WS+3}], 0 offen
K0_WO:
s_cmp_ge_u32 s2, 200
s_cbranch_scc1 K0_END
v_and_b32 v10, 31, v1
v_lshrrev_b32 v11, 2, v10
v_and_b32 v11, 1, v11
v_lshlrev_b32 v11, 4, v11
v_lshrrev_b32 v12, 3, v10
v_lshlrev_b32 v12, 2, v12
v_and_b32 v13, 3, v10
v_add3_u32 v11, v11, v12, v13
v_lshlrev_b32 v11, 1, v11
v_lshrrev_b32 v12, 5, v1
v_mul_u32_u24 v12, 12800, v12
v_add_u32 v11, v11, v12
v_lshlrev_b32 v14, 4, v1
s_lshl_b32 s38, s2, 2
""")
    for i in range(4):
        a(f"""
s_add_u32 s47, s38, {i}
s_mul_i32 s39, s47, 1639
s_lshr_b32 s39, s39, 16
s_mul_i32 s40, s39, 40
s_sub_u32 s40, s47, s40
s_mul_i32 s41, s40, 205
s_lshr_b32 s41, s41, 10
s_mul_i32 s42, s41, 5
s_sub_u32 s42, s40, s42
s_mul_i32 s43, s41, 80
s_lshl_b32 s64, s42, 3
s_lshl_b32 s65, s39, 6
""")
        for j in range(8):
            a(f"""
s_add_u32 s66, s64, {j}
s_mul_i32 s67, s66, 205
s_lshr_b32 s67, s67, 11
s_mul_i32 s67, s67, 10
s_add_u32 s66, s66, s67
s_add_u32 s66, s66, s43
s_mul_i32 s66, s66, 1280
s_add_u32 s66, s66, s65
buffer_load_ushort v{16+8*i+j}, v11, s[{S_WO}:{S_WO+3}], s66 offen
""")
    a("s_waitcnt vmcnt(0)")
    for i in range(4):
        for q in range(4):
            a(f"v_lshl_or_b32 v{48+4*i+q}, v{17+8*i+2*q}, 16, v{16+8*i+2*q}")
        a(f"s_add_u32 s47, s38, {i}")
        a(f"s_lshl_b32 s47, s47, 10")
        a(f"s_add_u32 s47, s47, {WS_WOP}")
        a(f"buffer_store_dwordx4 v[{48+4*i}:{48+4*i+3}], v14, s[{S_WS}:{S_WS+3}], s47 offen")
    a("s_branch K0_END")
    a(f"""
K0_TOUCH:
s_cmp_ge_u32 s35, 24
s_cbranch_scc1 K0_END
s_mov_b32 s68, s24
s_mov_b32 s69, s25
s_mov_b32 s70, 1966080
s_mov_b32 s71, 0x20000
s_mov_b32 s72, s26
s_mov_b32 s73, s27
s_mov_b32 s74, 1966080
s_mov_b32 s75, 0x20000
s_mov_b32 s76, s28
s_mov_b32 s77, s29
s_mov_b32 s78, 1966080
s_mov_b32 s79, 0x20000
s_lshr_b32 s42, s35, 2
s_lshl_b32 s42, s42, 3
s_add_u32 s42, s42, s34                ; a
s_and_b32 s43, s35, 3
s_mul_i32 s46, s43, 160
v_lshrrev_b32 v10, 2, v1
v_add_u32 v10, s46, v10
s_movk_i32 s47, 3072
v_mul_lo_u32 v10, v10, s47
v_and_b32 v11, 3, v1
v_lshlrev_b32 v11, 4, v11
s_lshl_b32 s47, s42, 6
v_add3_u32 v10, v10, v11, s47
v_lshlrev_b32 v12, 4, v1
""")
    for i in range(10):
        a(f"s_mov_b32 s47, {16*3072*i}")
        a(f"buffer_load_dwordx4 v[16:19], v10, s[68:71], s47 offen")
        a(f"buffer_load_dwordx4 v[20:23], v10, s[72:75], s47 offen")
    a(f"""
s_lshl_b32 s46, s42, 5
s_lshl_b32 s47, s43, 3
s_add_u32 s46, s46, s47
s_mul_i32 s46, s46, 1280
""")
    for i in range(10):
        a(f"s_add_u32 s47, s46, {1024*i}")
        a(f"buffer_load_dwordx4 v[24:27], v12, s[76:79], s47 offen")
    a("s_branch K0_END")
    a(f"""
K0_LN:
s_lshl_b32 s38, s2, 3
s_lshl_b32 s39, s{S_WAVE}, 2
s_add_u32 s38, s38, s39               ; t0
v_lshrrev_b32 v10, 4, v1
v_add_u32 v10, s38, v10               ; token
s_movk_i32 s39, 1280
v_mul_lo_u32 v11, v10, s39
v_and_b32 v12, 15, v1                 ; sub
v_lshlrev_b32 v13, 4, v12
v_add_u32 v11, v11, v13
""")
    X, WR = 16, 36
    for i in range(5):
        a(f"buffer_load_dwordx4 v[{X+4*i}:{X+4*i+3}], v11, s[{S_X}:{S_X+3}], 0 offen offset:{256*i}")
    for i in range(5):
        a(f"buffer_load_dwordx4 v[{WR+4*i}:{WR+4*i+3}], v13, s[{S_WR}:{S_WR+3}], 0 offen offset:{256*i}")
    a(f"""
s_mov_b32 s60, 0x3f803f80
s_mov_b32 s61, 0x00003f80
s_mov_b32 s62, 0x3f800000
v_mov_b32 v2, 0
v_mov_b32 v3, 0
s_waitcnt vmcnt(5)
""")
    for i in range(20):
        a(f"v_dot2_f32_bf16 v2, v{X+i}, s60, v2")
        a(f"v_dot2_f32_bf16 v3, v{X+i}, v{X+i}, v3")
    a("s_nop 3")
    for rot in (1, 2, 4, 8):
        a(f"v_add_f32_dpp v2, v2, v2 row_ror:{rot} row_mask:0xf bank_mask:0xf")
        a(f"v_add_f32_dpp v3, v3, v3 row_ror:{rot} row_mask:0xf bank_mask:0xf")
        a("s_nop 1")
    a(f"""
v_mul_f32 v2, 0x3acccccd, v2
v_mul_f32 v3, 0x3acccccd, v3
v_fma_f32 v3, -v2, v2, v3
v_max_f32 v3, 0, v3
v_cvt_pk_bf16_f32 v4, v2, v3
v_lshlrev_b32 v6, 16, v4              ; m_b
v_and_b32 v5, 0xffff0000, v4
v_add_f32 v5, 0x3727c5ac, v5
v_cvt_pk_bf16_f32 v5, v5, v5
v_and_b32 v5, 0xffff0000, v5
v_sqrt_f32 v5, v5
s_nop 0
v_cvt_pk_bf16_f32 v5, v5, v5
v_and_b32 v5, 0xffff0000, v5
v_rcp_f32 v7, v5                      ; rs
v_sub_f32 v8, 0, v6
s_nop 0
""")
    T = 56
    for i in range(20):
        a(f"v_dot2_f32_bf16 v{T}, v{X+i}, s61, v8")
        a(f"v_dot2_f32_bf16 v{T+1}, v{X+i}, s62, v8")
        a("s_nop 2")
        a(f"v_cvt_pk_bf16_f32 v{T+2}, v{T}, v{T+1}")
        a(f"v_lshlrev_b32 v{T}, 16, v{T+2}")
        a(f"v_and_b32 v{T+1}, 0xffff0000, v{T+2}")
        a(f"v_mul_f32 v{T}, v{T}, v7")
        a(f"v_mul_f32 v{T+1}, v{T+1}, v7")
        a(f"v_cvt_pk_bf16_f32 v{X+i}, v{T}, v{T+1}")
    a(f"""
v_lshrrev_b32 v2, 4, v10
v_mul_u32_u24 v2, 20480, v2
v_lshrrev_b32 v3, 2, v12
v_lshlrev_b32 v3, 10, v3              ; (sub>>2)*1024
v_and_b32 v4, 3, v12
v_lshlrev_b32 v4, 8, v4               ; qd*256
v_and_b32 v5, 15, v10
v_lshlrev_b32 v5, 4, v5
v_add3_u32 v2, v2, v3, v4
v_add_u32 v2, v2, v5
s_mov_b32 s39, {WS_XNF}
""")
    for i in range(5):
        a(f"s_add_u32 s40, s39, {4096*i}")
        a(f"buffer_store_dwordx4 v[{X+4*i}:{X+4*i+3}], v2, s[{S_WS}:{S_WS+3}], s40 offen")
    a(f"""
v_lshlrev_b32 v3, 3, v10
v_cmp_eq_u32 vcc, 0, v12
s_and_saveexec_b64 s[40:41], vcc
s_mov_b32 s39, {WS_STATS}
buffer_store_dwordx2 v[6:7], v3, s[{S_WS}:{S_WS+3}], s39 offen
s_mov_b64 exec, s[40:41]
v_mov_b32 v2, 0
s_waitcnt vmcnt(6)
""")
    for i in range(20):
        a(f"v_dot2_f32_bf16 v2, v{X+i}, v{WR+i}, v2")
    a("s_nop 3")
    for rot in (1, 2, 4, 8):
        a(f"v_add_f32_dpp v2, v2, v2 row_ror:{rot} row_mask:0xf bank_mask:0xf")
        a("s_nop 1")
    a(f"""
v_cvt_pk_bf16_f32 v2, v2, v2
v_and_b32 v2, 0xffff0000, v2
v_ashrrev_i32 v3, 31, v2
v_or_b32 v3, 0x80000000, v3
v_xor_b32 v2, v2, v3
v_and_b32 v2, 0xffff0000, v2
v_sub_u32 v3, 2047, v10
v_or_b32 v2, v2, v3
v_mov_b32 v3, v2
s_nop 1
v_permlane16_swap_b32 v2, v3
s_nop 1
v_max_u32 v2, v2, v3
v_mov_b32 v3, v2
s_nop 1
v_permlane32_swap_b32 v2, v3
s_nop 1
v_max_u32 v2, v2, v3
s_add_u32 s39, s38, {WS_AMAX}
v_mov_b32 v3, 0
s_mov_b64 exec, 1
buffer_store_dword v2, v3, s[{S_WS}:{S_WS+3}], s39 offen
K0_END:
s_endpgm
""")
    return a.text()
```

```python
from common import *
import os
L_W = 0
L_WPHI = 155648
L_ZERO = 157248
L_EX = 0
L_KVO = 40960
EXP = 288
K1_LDS = 158144
K1_BLOCK = 256
K1_VGPR = 256 + 160
K1_ACCOFF = 256
ROT_A = int(os.environ.get('ROT_A', '0')); ROT_B = int(os.environ.get('ROT_B', '0'))
S_WPHI, S_WS = 4, 8
S_RB, S_PAIR, S_WAVE, S_ROT = 32, 33, 37, 73
S_L2E = 44
V_LANE = 1
ACC = 16
WA, WBB = 80, 112
ST1 = Stamper(74, 14)

def emit_softmax(a, P):
    PKD, EM, OUT = 144, 164, 184
    for i in range(10):
        a(f"v_cvt_pk_bf16_f32 v{PKD+i}, v{P+2*i}, v{P+2*i+1}")
    for i in range(10):
        a(f"v_lshlrev_b32 v{P+2*i}, 16, v{PKD+i}")
        a(f"v_and_b32 v{P+2*i+1}, 0xffff0000, v{PKD+i}")
    MX, MN = 154, 155
    a(f"v_max3_f32 v{MX}, v{P}, v{P+1}, v{P+2}")
    a(f"v_min3_f32 v{MN}, v{P}, v{P+1}, v{P+2}")
    for i in range(3, 19, 2):
        a(f"v_max3_f32 v{MX}, v{MX}, v{P+i}, v{P+i+1}")
        a(f"v_min3_f32 v{MN}, v{MN}, v{P+i}, v{P+i+1}")
    a(f"v_max_f32 v{MX}, v{MX}, v{P+19}")
    a(f"v_min_f32 v{MN}, v{MN}, v{P+19}")
    AP, AM = 156, 158
    a(f"v_mul_f32 v{AP}, s{S_L2E}, v{MX}")
    a(f"v_mul_f32 v{AM}, s{S_L2E}, v{MN}")
    a(f"v_mov_b32 v{AP+1}, v{AP}")
    a(f"v_mov_b32 v{AM+1}, v{AM}")
    for i in range(10):
        a(f"v_pk_fma_f32 v[{EM+2*i}:{EM+2*i+1}], v[{P+2*i}:{P+2*i+1}], s[{S_L2E}:{S_L2E+1}], v[{AM}:{AM+1}] neg_lo:[1,0,0] neg_hi:[1,0,0]")
        a(f"v_pk_fma_f32 v[{P+2*i}:{P+2*i+1}], v[{P+2*i}:{P+2*i+1}], s[{S_L2E}:{S_L2E+1}], v[{AP}:{AP+1}] neg_lo:[0,0,1] neg_hi:[0,0,1]")
    for i in range(20):
        a(f"v_exp_f32 v{EM+i}, v{EM+i}")
        a(f"v_exp_f32 v{P+i}, v{P+i}")
    SP, SM = 156, 158
    a("s_nop 0")
    a(f"v_pk_add_f32 v[{SM}:{SM+1}], v[{EM}:{EM+1}], v[{EM+2}:{EM+3}]")
    a(f"v_pk_add_f32 v[{SP}:{SP+1}], v[{P}:{P+1}], v[{P+2}:{P+3}]")
    for i in range(2, 10):
        a(f"v_pk_add_f32 v[{SM}:{SM+1}], v[{SM}:{SM+1}], v[{EM+2*i}:{EM+2*i+1}]")
        a(f"v_pk_add_f32 v[{SP}:{SP+1}], v[{SP}:{SP+1}], v[{P+2*i}:{P+2*i+1}]")
    a(f"v_add_f32 v{SM}, v{SM}, v{SM+1}")
    a(f"v_add_f32 v{SP}, v{SP}, v{SP+1}")
    a(f"v_rcp_f32 v{SM}, v{SM}")
    a(f"v_rcp_f32 v{SP}, v{SP}")
    a("s_nop 0")
    a(f"v_mov_b32 v{SM+1}, v{SM}")
    a(f"v_mov_b32 v{SP+1}, v{SP}")
    for i in range(10):
        a(f"v_pk_mul_f32 v[{P+2*i}:{P+2*i+1}], v[{P+2*i}:{P+2*i+1}], v[{SP}:{SP+1}]")
        a(f"v_pk_mul_f32 v[{EM+2*i}:{EM+2*i+1}], v[{EM+2*i}:{EM+2*i+1}], v[{SM}:{SM+1}]")
    for i in range(10):
        a(f"v_cvt_pk_bf16_f32 v{OUT+i}, v{P+2*i}, v{P+2*i+1}")
    for i in range(10):
        a(f"v_cvt_pk_bf16_f32 v{OUT+10+i}, v{EM+2*i}, v{EM+2*i+1}")
    return OUT

def gen_k1():
    a = Asm()
    a.lines.append(kstart("k1_kernel"))
    ST1.stamp(a, 'entry', 0)
    a(f"""
s_cmp_ge_u32 s2, 256
s_cbranch_scc1 K1_END
s_load_dwordx2 s[52:53], s[0:1], 16
s_load_dwordx4 s[24:27], s[0:1], 48
s_load_dwordx2 s[28:29], s[0:1], 64
s_load_dwordx4 s[60:63], s[0:1], 80
v_and_b32 v{V_LANE}, 63, v0
v_lshrrev_b32 v10, 6, v0
s_nop 0
v_readfirstlane_b32 s{S_WAVE}, v10
s_and_b32 s38, s2, 7
s_lshr_b32 s39, s2, 3
s_and_b32 s40, s38, 3
s_lshl_b32 s40, s40, 2
s_and_b32 s41, s39, 3
s_add_u32 s{S_RB}, s40, s41
s_lshr_b32 s42, s38, 2
s_lshr_b32 s41, s39, 2            ; pl
s_lshl_b32 s40, s42, 3
s_add_u32 s{S_PAIR}, s40, s41
s_and_b32 s40, s39, 3
s_mul_i32 s40, s40, {ROT_A}
s_mul_i32 s{S_ROT}, s41, {ROT_B}
s_add_u32 s{S_ROT}, s{S_ROT}, s40
s_mul_i32 s40, s{S_ROT}, 13108
s_lshr_b32 s40, s40, 16
s_mul_i32 s40, s40, 5
s_sub_u32 s{S_ROT}, s{S_ROT}, s40
s_mov_b32 s{S_L2E}, 0x3fb8aa3b
s_mov_b32 s{S_L2E+1}, 0x3fb8aa3b
s_waitcnt lgkmcnt(0)
s_mov_b32 s{S_WPHI}, s52
s_mov_b32 s{S_WPHI+1}, s53
s_mov_b32 s{S_WPHI+2}, 25600
s_mov_b32 s{S_WPHI+3}, 0x20000
s_mov_b32 s{S_WS}, s62
s_mov_b32 s{S_WS+1}, s63
s_mov_b32 s{S_WS+2}, {WS_BYTES}
s_mov_b32 s{S_WS+3}, 0x20000
v_lshlrev_b32 v2, 4, v{V_LANE}
s_lshl_b32 s38, s{S_RB}, 3
s_lshl_b32 s39, s{S_WAVE}, 1
s_add_u32 s38, s38, s39
s_mul_i32 s46, s38, 20480
s_add_u32 s46, s46, {WS_XNF}
s_mul_i32 s47, s{S_PAIR}, 153600
s_add_u32 s47, s47, {WS_WPF}
s_lshl_b32 s72, s{S_WAVE}, 10
s_mov_b32 s40, s{S_ROT}
""")
    for g in range(5):
        a(f"s_lshl_b32 s41, s40, 12")
        a(f"s_add_u32 s{48+2*g}, s41, s46")
        a(f"s_mul_i32 s41, s40, 30720")
        a(f"s_add_u32 s41, s41, s47")
        a(f"s_add_u32 s{49+2*g}, s41, s72")
        a("s_add_u32 s40, s40, 1")
        a("s_cmp_eq_u32 s40, 5")
        a("s_cselect_b32 s40, 0, s40")
    def issue_part(g, j):
        a(f"buffer_load_dwordx4 a[{16*g+4*j}:{16*g+4*j+3}], v2, s[{S_WS}:{S_WS+3}], s{48+2*g} offen offset:{1024*j}")
        a(f"s_add_u32 s41, s{48+2*g}, 20480")
        a(f"buffer_load_dwordx4 a[{80+16*g+4*j}:{80+16*g+4*j+3}], v2, s[{S_WS}:{S_WS+3}], s41 offen offset:{1024*j}")
        for e in range(2):
            c = 2*j + e
            if c == 7:
                a(f"s_cmp_ge_u32 s{S_WAVE}, 2")
                a(f"s_cbranch_scc1 K1_SKIPC{g}")
            a(f"s_add_u32 m0, s72, {30720*g + 4096*c}")
            a(f"s_add_u32 s41, s{49+2*g}, {4096*c}")
            a(f"buffer_load_dwordx4 v2, s[{S_WS}:{S_WS+3}], s41 offen lds")
            if c == 7:
                a(f"K1_SKIPC{g}:")
    for g in range(2):
        for j in range(4):
            issue_part(g, j)
        if g == 0: a("s_barrier")
    a(f"""
s_cmp_ge_u32 s{S_WAVE}, 2
s_cbranch_scc1 K1_MISC_Z
s_mul_i32 s38, s{S_PAIR}, 1600
v_lshlrev_b32 v10, 4, v0
s_add_u32 m0, s72, {L_WPHI}
v_cmp_gt_u32 vcc, 100, v0
s_and_saveexec_b64 s[64:65], vcc
buffer_load_dwordx4 v10, s[{S_WPHI}:{S_WPHI+3}], s38 offen lds
s_mov_b64 exec, s[64:65]
s_branch K1_MISC_DONE
K1_MISC_Z:
s_cmp_lg_u32 s{S_WAVE}, 2
s_cbranch_scc1 K1_MISC_DONE
v_mov_b32 v10, 0
v_mov_b32 v11, 0
v_mov_b32 v12, 0
v_mov_b32 v13, 0
v_add_u32 v14, {L_ZERO}, v2
v_cmp_gt_u32 vcc, 56, v{V_LANE}
s_and_saveexec_b64 s[64:65], vcc
ds_write_b128 v14, v[10:13]
s_mov_b64 exec, s[64:65]
K1_MISC_DONE:
v_lshrrev_b32 v3, 4, v{V_LANE}
v_lshlrev_b32 v3, 3, v3
v_bfe_u32 v4, v{V_LANE}, 3, 1
v_lshlrev_b32 v4, 2, v4
v_and_b32 v5, 3, v{V_LANE}
v_add3_u32 v3, v3, v4, v5
v_lshlrev_b32 v3, 4, v3
v_add_u32 v3, 7168, v3
""")
    ST1.stamp(a, 'issued', 1)
    def read_list(s, buf):
        g, j = divmod(s, 4)
        base = 30720*g + 7680*j
        B = WA if buf == 0 else WBB
        L = [f"v_add_u32 v14, {base}, v2\nv_add_u32 v15, {base}, v3\nds_read_b128 v[{B}:{B+3}], v14"]
        for t in range(1, 7):
            L.append(f"ds_read_b128 v[{B+4*t}:{B+4*t+3}], v14 offset:{1024*t}")
        L.append(f"ds_read_b128 v[{B+28}:{B+31}], v15")
        return L
    def issue_list(g, j):
        sub = Asm()
        _a = a
        return sub
    for s in range(20):
        g, j = divmod(s, 4)
        if j == 0:
            younger = 15 if g < 4 else 0
            a(f"s_waitcnt vmcnt({younger}) lgkmcnt(0)")
            a("s_barrier")
            ST1.stamp(a, f'b{g}', 4+g)
            for x in read_list(s, s & 1): a(x)
        nxt = read_list(s+1, (s+1) & 1) if j < 3 else []
        if g + 2 < 5:
            issue_part(g+2, j)
        a("s_waitcnt lgkmcnt(0)")
        B = WA if (s & 1) == 0 else WBB
        for t in range(8):
            for tau in range(2):
                d = ACC + 32*tau + 4*t
                c = f"v[{d}:{d+3}]" if s > 0 else "0"
                a(f"v_mfma_f32_16x16x32_bf16 v[{d}:{d+3}], v[{B+4*t}:{B+4*t+3}], a[{80*tau+4*s}:{80*tau+4*s+3}], {c}")
            if nxt and t < 4:
                a(nxt[2*t]); a(nxt[2*t+1])
    ST1.stamp(a, 'kloop1', 9)
    a(f"""
v_and_b32 v9, 15, v{V_LANE}
v_mul_u32_u24 v10, {EXP}, v9          ; tok16*EXP
v_lshrrev_b32 v11, 4, v{V_LANE}       ; quad
v_lshrrev_b32 v12, 1, v11
v_mul_u32_u24 v12, 40, v12
v_and_b32 v13, 1, v11
v_lshlrev_b32 v13, 3, v13
v_add3_u32 v12, v12, v13, v10
v_add_u32 v12, 160, v12
v_mul_u32_u24 v13, 80, v11
v_add_u32 v13, v13, v10
v_subrev_u32 v13, 160, v13
v_and_b32 v14, 3, v{V_LANE}
v_bfe_u32 v15, v{V_LANE}, 2, 2
v_mul_u32_u24 v15, 40, v15
v_and_b32 v8, 1, v11
v_mul_u32_u24 v8, 800, v8
v_add_u32 v15, v15, v8
v_add_u32 v15, {L_WPHI}, v15
v_mov_b32 v8, {L_ZERO}
v_cmp_eq_u32 vcc, v14, v11
s_nop 1
v_cndmask_b32 v15, v8, v15, vcc
v_mul_u32_u24 v7, 1280, v11
v_lshlrev_b32 v9, 4, v9
v_add_u32 v7, v7, v9
s_barrier
""")
    for tau in range(2):
        A0 = ACC + 32*tau
        PB, VP = 204, 216
        for t in range(5):
            a(f"v_cvt_pk_bf16_f32 v{PB+2*t}, v{A0+4*t}, v{A0+4*t+1}")
            a(f"v_cvt_pk_bf16_f32 v{PB+2*t+1}, v{A0+4*t+2}, v{A0+4*t+3}")
        a(f"v_mov_b32 v{PB+10}, 0")
        a(f"v_mov_b32 v{PB+11}, 0")
        for t in range(3):
            a(f"v_cvt_pk_bf16_f32 v{VP+2*t}, v{A0+20+4*t}, v{A0+20+4*t+1}")
            a(f"v_cvt_pk_bf16_f32 v{VP+2*t+1}, v{A0+20+4*t+2}, v{A0+20+4*t+3}")
        a(f"""
s_lshl_b32 s39, s{S_WAVE}, 1
s_add_u32 s39, s39, {tau}
s_mul_i32 s38, s39, {16*EXP}
s_add_u32 s38, s38, {L_EX}
v_add_u32 v4, s38, v12
v_add_u32 v5, s38, v13
v_add_u32 v6, s38, v10
""")
        a(f"ds_write_b64 v4, v[{VP}:{VP+1}]")
        a(f"ds_write_b64 v4, v[{VP+2}:{VP+3}] offset:16")
        a("s_mov_b32 exec_lo, 0x0000ffff")
        a("s_mov_b32 exec_hi, 0x0000ffff")
        a(f"ds_write_b64 v4, v[{VP+4}:{VP+5}] offset:32")
        a(f"v_mov_b32 v222, 0x00003f80")
        a(f"v_mov_b32 v223, 0")
        a(f"ds_write_b64 v6, v[222:223] offset:240")
        a("s_mov_b64 exec, -1")
        AF = 224
        for t in range(5):
            b = AF + 12 * (t & 1)
            for c in range(3):
                a(f"ds_read_b64_tr_b16 v[{b+4*c}:{b+4*c+1}], v15 offset:{(8*c)*40 + 8*t}")
                if c < 2:
                    a(f"ds_read_b64_tr_b16 v[{b+4*c+2}:{b+4*c+3}], v15 offset:{(8*c+4)*40 + 8*t}")
                else:
                    a(f"v_mov_b32 v{b+4*c+2}, 0")
                    a(f"v_mov_b32 v{b+4*c+3}, 0")
            if t > 0:
                pb = AF + 12 * ((t-1) & 1)
                a("s_waitcnt lgkmcnt(5)")
                for c in range(3):
                    cc = "0" if c == 0 else f"v[{A0+4*(t-1)}:{A0+4*(t-1)+3}]"
                    a(f"v_mfma_f32_16x16x32_bf16 v[{A0+4*(t-1)}:{A0+4*(t-1)+3}], v[{pb+4*c}:{pb+4*c+3}], v[{PB+4*c}:{PB+4*c+3}], {cc}")
        a("s_waitcnt lgkmcnt(0)")
        pb = AF
        for c in range(3):
            cc = "0" if c == 0 else f"v[{A0+16}:{A0+19}]"
            a(f"v_mfma_f32_16x16x32_bf16 v[{A0+16}:{A0+19}], v[{pb+4*c}:{pb+4*c+3}], v[{PB+4*c}:{PB+4*c+3}], {cc}")
        a(f"""
s_lshl_b32 s40, s{S_RB}, 3
s_add_u32 s39, s39, s40
s_lshl_b32 s39, s39, 5
s_lshl_b32 s40, s{S_PAIR}, 1
s_add_u32 s39, s39, s40
s_mul_i32 s39, s39, 1280
s_add_u32 s39, s39, {WS_PQ}
s_nop 3
""")
        OUTR = emit_softmax(a, A0)
        a("s_mov_b32 exec_lo, 0")
        for c in range(5):
            a(f"ds_write_b128 v5, v[{OUTR+4*c}:{OUTR+4*c+3}] offset:{16*c}")
        a("s_mov_b32 exec_lo, -1")
        a("s_mov_b32 exec_hi, 0")
        for c in range(5):
            a(f"buffer_store_dwordx4 v[{OUTR+4*c}:{OUTR+4*c+3}], v7, s[{S_WS}:{S_WS+3}], s39 offen offset:{256*c}")
        a("s_mov_b64 exec, -1")
        a("s_nop 1")
    a("s_waitcnt lgkmcnt(0)")
    a("s_barrier")
    ST1.stamp(a, 'epi1', 10)
    a(f"""
s_lshr_b32 s40, s{S_WAVE}, 1
s_and_b32 s41, s{S_WAVE}, 1
v_lshrrev_b32 v10, 2, v{V_LANE}
v_mul_u32_u24 v10, {EXP}, v10
v_add_u32 v10, {L_EX}, v10
v_and_b32 v11, 3, v{V_LANE}
v_lshlrev_b32 v12, 3, v11
s_mul_i32 s42, s40, 80
v_add3_u32 v13, v10, v12, s42
s_mul_i32 s42, s40, 40
s_add_u32 s42, s42, 160
v_add_u32 v14, s42, v12
s_add_u32 s43, s42, 32
v_mov_b32 v15, 240
v_mov_b32 v9, s43
v_cmp_eq_u32 vcc, 0, v11
s_nop 1
v_cndmask_b32 v15, v15, v9, vcc
s_cmp_eq_u32 s41, 0
s_cselect_b64 vcc, -1, 0
s_nop 1
v_cndmask_b32 v14, v15, v14, vcc
v_add_u32 v14, v14, v10
""")
    KAB = [80, 112]
    def kvreads(ks, KA):
        o = ks * 32 * EXP
        a(f"ds_read_b64_tr_b16 v[{KA}:{KA+1}], v14 offset:{o}")
        a(f"ds_read_b64_tr_b16 v[{KA+2}:{KA+3}], v14 offset:{o + 16*EXP}")
        for Tt in range(3):
            a(f"ds_read_b64_tr_b16 v[{KA+4+4*Tt}:{KA+5+4*Tt}], v13 offset:{o + 32*Tt}")
            a(f"ds_read_b64_tr_b16 v[{KA+6+4*Tt}:{KA+7+4*Tt}], v13 offset:{o + 16*EXP + 32*Tt}")
    kvreads(0, KAB[0])
    for ks in range(4):
        KA = KAB[ks & 1]
        if ks < 3:
            kvreads(ks+1, KAB[(ks+1) & 1])
            a("s_waitcnt lgkmcnt(8)")
        else:
            a("s_waitcnt lgkmcnt(0)")
        for Tt in range(3):
            c = f"v[{ACC+4*Tt}:{ACC+4*Tt+3}]" if ks > 0 else "0"
            a(f"v_mfma_f32_16x16x32_bf16 v[{ACC+4*Tt}:{ACC+4*Tt+3}], v[{KA}:{KA+3}], v[{KA+4+4*Tt}:{KA+7+4*Tt}], {c}")
    a(f"""
v_lshrrev_b32 v10, 4, v{V_LANE}
v_mul_u32_u24 v10, 640, v10
v_and_b32 v11, 15, v{V_LANE}
v_lshlrev_b32 v11, 2, v11
v_add_u32 v10, v10, v11
s_mul_i32 s42, s40, 3360
s_mul_i32 s43, s41, 2560
s_add_u32 s42, s42, s43
s_add_u32 s42, s42, {L_KVO}
v_add_u32 v10, s42, v10
s_cmp_eq_u32 s41, 0
s_cselect_b32 s46, -1, -1
s_cselect_b32 s47, -1, 0
s_cselect_b32 s38, -1, 0xffff
s_cselect_b32 s39, -1, 0
s_mov_b32 s64, 0x00ff00ff
s_mov_b32 s65, 0x00ff00ff
s_nop 4
""")
    for Tt in range(3):
        for i in range(4):
            lo, hi = ("s46", "s47") if i == 0 else ("s38", "s39")
            if Tt < 2:
                a(f"s_mov_b32 exec_lo, {lo}")
                a(f"s_mov_b32 exec_hi, {hi}")
            else:
                a(f"s_and_b32 exec_lo, {lo}, s64")
                a(f"s_and_b32 exec_hi, {hi}, s65")
            a(f"ds_write_b32 v10, v{ACC+4*Tt+i} offset:{160*i + 64*Tt}")
    a(f"""
s_mov_b64 exec, -1
s_waitcnt lgkmcnt(0)
s_barrier
v_lshlrev_b32 v10, 2, v0
v_add_u32 v11, {L_KVO}, v10
""")
    for i in range(7):
        a(f"ds_read_b32 v{16+i}, v11 offset:{1024*i}")
    a(f"s_mul_i32 s42, s{S_PAIR}, 6720")
    a("s_waitcnt lgkmcnt(0)")
    for i in range(6):
        a(f"s_add_u32 s43, s42, {1024*i}")
        a(f"buffer_atomic_add_f32 v{16+i}, v10, s[{S_WS}:{S_WS+3}], s43 offen")
    a(f"""
s_add_u32 s43, s42, 6144
v_cmp_gt_u32 vcc, 144, v0
s_and_saveexec_b64 s[64:65], vcc
s_cbranch_execz K1_AT_DONE
buffer_atomic_add_f32 v22, v10, s[{S_WS}:{S_WS+3}], s43 offen
K1_AT_DONE:
s_mov_b64 exec, s[64:65]
""")
    a(f"""
s_cmp_lg_u32 s2, 0
s_cbranch_scc1 K1_NOKEY
s_cmp_lg_u32 s{S_WAVE}, 3
s_cbranch_scc1 K1_NOKEY
v_lshlrev_b32 v14, 5, v{V_LANE}
s_mov_b32 s64, {WS_AMAX}
buffer_load_dwordx4 v[136:139], v14, s[{S_WS}:{S_WS+3}], s64 offen
buffer_load_dwordx4 v[140:143], v14, s[{S_WS}:{S_WS+3}], s64 offen offset:16
s_waitcnt vmcnt(0)
v_max_u32 v136, v136, v137
v_max_u32 v138, v138, v139
v_max_u32 v140, v140, v141
v_max_u32 v142, v142, v143
v_max_u32 v136, v136, v138
v_max_u32 v140, v140, v142
v_max_u32 v136, v136, v140
s_nop 1
v_max_u32_dpp v136, v136, v136 row_ror:1 row_mask:0xf bank_mask:0xf
s_nop 1
v_max_u32_dpp v136, v136, v136 row_ror:2 row_mask:0xf bank_mask:0xf
s_nop 1
v_max_u32_dpp v136, v136, v136 row_ror:4 row_mask:0xf bank_mask:0xf
s_nop 1
v_max_u32_dpp v136, v136, v136 row_ror:8 row_mask:0xf bank_mask:0xf
v_mov_b32 v137, v136
s_nop 1
v_permlane16_swap_b32 v136, v137
s_nop 1
v_max_u32 v136, v136, v137
v_mov_b32 v137, v136
s_nop 1
v_permlane32_swap_b32 v136, v137
s_nop 1
v_max_u32 v136, v136, v137
v_mov_b32 v14, 0
s_mov_b32 s64, {WS_KEY}
s_mov_b64 exec, 1
buffer_store_dword v136, v14, s[{S_WS}:{S_WS+3}], s64 offen
s_mov_b64 exec, -1
K1_NOKEY:
""")
    if os.environ.get("TOUCH", "1") == "1":
        a(f"""
s_lshr_b32 s41, s2, 3
s_mul_i32 s42, s41, 25600
s_mul_i32 s43, s{S_WAVE}, 6400
s_add_u32 s42, s42, s43
s_add_u32 s42, s42, {WS_WOP}
""")
        for i in range(7):
            a(f"s_add_u32 s43, s42, {1024*i}")
            a(f"buffer_load_dwordx4 v[{64+4*i}:{64+4*i+3}], v2, s[{S_WS}:{S_WS+3}], s43 offen")
        a(f"""
s_cmp_ge_u32 s41, 24
s_cbranch_scc1 K1_T_DONE
s_mov_b32 s12, s24
s_mov_b32 s13, s25
s_mov_b32 s14, 1966080
s_mov_b32 s15, 0x20000
s_mov_b32 s16, s26
s_mov_b32 s17, s27
s_mov_b32 s18, 1966080
s_mov_b32 s19, 0x20000
s_mov_b32 s20, s28
s_mov_b32 s21, s29
s_mov_b32 s22, 1966080
s_mov_b32 s23, 0x20000
s_lshr_b32 s42, s41, 2
s_lshl_b32 s42, s42, 3
s_and_b32 s43, s2, 7
s_add_u32 s42, s42, s43
s_and_b32 s43, s41, 3
s_mul_i32 s46, s43, 160
s_mul_i32 s47, s{S_WAVE}, 40
s_add_u32 s46, s46, s47
v_lshrrev_b32 v10, 2, v{V_LANE}
v_add_u32 v10, s46, v10
s_movk_i32 s47, 3072
v_mul_lo_u32 v10, v10, s47
v_and_b32 v11, 3, v{V_LANE}
v_lshlrev_b32 v11, 4, v11
s_lshl_b32 s47, s42, 6
v_add3_u32 v10, v10, v11, s47
""")
        for i in range(3):
            a(f"s_mov_b32 s47, {(8 if i == 2 else 0)*3072 + (16*3072 if i >= 1 else 0)}")
            a(f"buffer_load_dwordx4 v[{96+8*i}:{96+8*i+3}], v10, s[12:15], s47 offen")
            a(f"buffer_load_dwordx4 v[{100+8*i}:{100+8*i+3}], v10, s[16:19], s47 offen")
        a(f"""
s_lshl_b32 s46, s42, 5
s_lshl_b32 s47, s43, 3
s_add_u32 s46, s46, s47
s_mul_i32 s46, s46, 1280
s_mul_i32 s47, s{S_WAVE}, 2560
s_add_u32 s46, s46, s47
""")
        for i in range(3):
            a(f"buffer_load_dwordx4 v[{120+4*i}:{120+4*i+3}], v2, s[20:23], s46 offen offset:{1024*i if i < 2 else 1536}")
        a("K1_T_DONE:")
    ST1.stamp(a, 'kv', 11)
    ST1.stamp(a, 'end', 13)
    ST1.flush(a, S_WS, WS_TS1, S_WAVE, "K1_TSF")
    a("K1_END:")
    a("s_endpgm")
    return a.text()
```

```python
from common import *
K2_GRID = 208
K2_LDS = 114688
K2_VGPR = 256
NAUX = 48
S_X, S_WS, S_DBG, S_OUT, S_G, S_U, S_D = 4, 8, 12, 16, 20, 24, 28
S_WAVE, S_RBK, S_CB, S_IDX, S_KEY = 32, 33, 34, 35, 36
V_LANE = 1
OPK = 16
KVP = 26
PQB = 74
DAC = 170
KVA = 170
def WOF_(k):
    return 202 + 4*k if k < 13 else 74 + 4*(k-13)
L_OF = 0
L_RED = 81920

ST2 = Stamper(0, 7, regs=[72,74,76,78,96,98,100])
def gen_k2():
    a = Asm()
    a.lines.append(kstart("k2_kernel"))
    ST2.stamp(a, "entry", 0)
    a(f"""
s_cmp_ge_u32 s2, {K2_GRID}
s_cbranch_scc1 K2_END
s_load_dwordx2 s[48:49], s[0:1], 0
s_load_dwordx4 s[52:55], s[0:1], 48
s_load_dwordx4 s[56:59], s[0:1], 64
s_load_dwordx4 s[60:63], s[0:1], 80
v_and_b32 v{V_LANE}, 63, v0
v_lshrrev_b32 v10, 6, v0
s_nop 0
v_readfirstlane_b32 s{S_WAVE}, v10
s_waitcnt lgkmcnt(0)
s_mov_b32 s{S_X}, s48
s_mov_b32 s{S_X+1}, s49
s_mov_b32 s{S_X+2}, 2621440
s_mov_b32 s{S_X+3}, 0x20000
s_mov_b32 s{S_G}, s52
s_mov_b32 s{S_G+1}, s53
s_mov_b32 s{S_G+2}, 1966080
s_mov_b32 s{S_G+3}, 0x20000
s_mov_b32 s{S_U}, s54
s_mov_b32 s{S_U+1}, s55
s_mov_b32 s{S_U+2}, 1966080
s_mov_b32 s{S_U+3}, 0x20000
s_mov_b32 s{S_D}, s56
s_mov_b32 s{S_D+1}, s57
s_mov_b32 s{S_D+2}, 1966080
s_mov_b32 s{S_D+3}, 0x20000
s_mov_b32 s{S_OUT}, s58
s_mov_b32 s{S_OUT+1}, s59
s_mov_b32 s{S_OUT+2}, 2621440
s_mov_b32 s{S_OUT+3}, 0x20000
s_mov_b32 s{S_DBG}, s60
s_mov_b32 s{S_DBG+1}, s61
s_mov_b32 s{S_DBG+2}, 256
s_mov_b32 s{S_DBG+3}, 0x20000
s_mov_b32 s{S_WS}, s62
s_mov_b32 s{S_WS+1}, s63
s_mov_b32 s{S_WS+2}, {WS_BYTES}
s_mov_b32 s{S_WS+3}, 0x20000
s_add_u32 s64, s62, {WS_KEY}
s_addc_u32 s65, s63, 0
s_load_dword s80, s[64:65], 0
s_cmp_lt_u32 s2, {NAUX}
s_cbranch_scc1 K2_AUX
""")
    gen_main(a)
    a("K2_AUX:")
    gen_aux(a)
    a("K2_END:")
    a("s_endpgm")
    return a.text()

def emit_idx(a, wait):
    a('s_waitcnt lgkmcnt(0)')
    a(f"s_mov_b32 s{S_KEY}, s80")
    a("s_and_b32 s81, s80, 0x7ff")
    a(f"s_sub_u32 s{S_IDX}, 2047, s81")

def gen_main(a):
    a(f"""
s_sub_u32 s38, s2, {NAUX}
s_and_b32 s39, s38, 7           ; xcd
s_lshr_b32 s40, s38, 3          ; j 0..19
s_and_b32 s41, s40, 3
s_lshl_b32 s39, s39, 2
s_add_u32 s{S_RBK}, s39, s41
s_lshr_b32 s{S_CB}, s40, 2
; ---- addresses ----
v_and_b32 v10, 31, v{V_LANE}
v_lshrrev_b32 v11, 3, v10
v_lshlrev_b32 v11, 2, v11
v_and_b32 v12, 3, v10
v_add_u32 v11, v11, v12          ; q'
v_bfe_u32 v12, v10, 2, 1
v_mul_u32_u24 v12, 10, v12
v_add_u32 v12, v12, v11
v_mov_b32 v13, 20
v_cmp_gt_u32 vcc, 10, v11
s_nop 1
v_cndmask_b32 v12, v13, v12, vcc ; r
v_mul_u32_u24 v12, 160, v12
v_lshrrev_b32 v13, 5, v{V_LANE}  ; hf
v_lshlrev_b32 v14, 5, v13
v_add_u32 v2, v12, v14
v_mov_b32 v3, v12
v_bfe_u32 v11, v10, 4, 1
v_mul_u32_u24 v11, 40960, v11
v_lshlrev_b32 v14, 8, v13
v_and_b32 v15, 15, v10
v_lshlrev_b32 v15, 4, v15
v_add3_u32 v4, v11, v14, v15
s_lshl_b32 s42, s{S_WAVE}, 2              ; head0 = 4w
s_mul_i32 s43, s42, 3360
s_lshl_b32 s44, s{S_RBK}, 2               ; tt0
s_lshl_b32 s44, s44, 5
s_add_u32 s44, s44, s42
s_mul_i32 s44, s44, 1280
s_add_u32 s44, s44, {WS_PQ}
s_and_b32 s45, s{S_WAVE}, 3               ; nu
s_lshr_b32 s46, s{S_WAVE}, 2              ; eta
s_lshl_b32 s47, s{S_CB}, 2
s_add_u32 s47, s47, s45
s_mul_i32 s47, s47, 40
s_mul_i32 s66, s46, 20
s_add_u32 s47, s47, s66
s_lshl_b32 s47, s47, 10
s_add_u32 s47, s47, {WS_WOP}
v_lshlrev_b32 v5, 4, v{V_LANE}
""")
    def load_pq(h):
        pb = PQB + 24*h
        a(f"s_add_u32 s66, s44, {1280*h}")
        a(f"s_add_u32 s67, s66, {2*40960}")
        for tau in range(2):
            sb = "s66" if tau == 0 else "s67"
            for s in range(3):
                r = pb + 12*tau + 4*s
                if s == 2:
                    for j in range(4):
                        a(f"v_mov_b32 v{r+j}, 0")
                    a("s_mov_b32 exec_hi, 0")
                a(f"buffer_load_dwordx4 v[{r}:{r+3}], v4, s[{S_WS}:{S_WS+3}], {sb} offen offset:{512*s}")
                if s == 2:
                    a("s_mov_b32 exec_hi, -1")
    a(f"""
s_add_u32 s66, s43, {WS_KVACC}
v_lshlrev_b32 v9, 4, v{V_LANE}
s_mov_b32 m0, s43
""")
    for i in range(14):
        if i == 13:
            a("s_mov_b64 exec, 0xff")
        a(f"buffer_load_dwordx4 v9, s[{S_WS}:{S_WS+3}], s66 offen lds")
        if i < 13:
            a(f"s_add_u32 m0, m0, 1024")
            a(f"s_add_u32 s66, s66, 1024")
    a("s_mov_b64 exec, -1")
    for h in range(4):
        load_pq(h)
    a("s_barrier")
    def load_wo(k):
        a(f"s_add_u32 s67, s47, {4096*(k//4)}")
        a(f"buffer_load_dwordx4 v[{WOF_(k)}:{WOF_(k)+3}], v5, s[{S_WS}:{S_WS+3}], s67 offen offset:{1024*(k%4)}")
    for k in range(13):
        load_wo(k)
    a(f"""
s_mul_i32 s66, s{S_WAVE}, 10240
v_lshlrev_b32 v6, 4, v{V_LANE}
v_add_u32 v6, s66, v6
s_mov_b32 s68, 0x358637bd      ; 1e-6
v_add_u32 v2, s43, v2
v_add_u32 v3, s43, v3
""")
    ST2.stamp(a, 'issued', 1)
    a("s_waitcnt vmcnt(37)")
    for h in range(4):
        kb = KVA
        for s_ in range(3):
            vo = 2 if s_ < 2 else 3
            a(f"ds_read_b128 v[{kb+8*s_}:{kb+8*s_+3}], v{vo} offset:{3360*h + 64*s_}")
            a(f"ds_read_b128 v[{kb+8*s_+4}:{kb+8*s_+7}], v{vo} offset:{3360*h + 64*s_ + 16}")
        a("s_waitcnt lgkmcnt(0)")
        for i in range(12):
            a(f"v_cvt_pk_bf16_f32 v{KVP+12*h+i}, v{kb+2*i}, v{kb+2*i+1}")
    a("s_barrier")
    for h in range(4):
        pb = PQB + 24*h
        a(f"s_waitcnt vmcnt({[31,25,26,20][h]})")
        for tau in range(2):
            for s_ in range(3):
                c = f"v[{DAC+16*tau}:{DAC+16*tau+15}]" if s_ > 0 else "0"
                a(f"v_mfma_f32_32x32x16_bf16 v[{DAC+16*tau}:{DAC+16*tau+15}], v[{KVP+12*h+4*s_}:{KVP+12*h+4*s_+3}], v[{pb+12*tau+4*s_}:{pb+12*tau+4*s_+3}], {c}")
        if h == 1:
            for k in range(13, 20):
                load_wo(k)
        a("s_nop 7")
        a("s_nop 3")
        for tau in range(2):
            d = DAC + 16*tau
            a(f"v_cvt_pk_bf16_f32 v10, v{d+10}, v{d+10}")
            a(f"v_and_b32 v10, 0xffff0000, v10")
            a(f"v_add_f32 v10, s68, v10")
            a(f"v_cvt_pk_bf16_f32 v10, v10, v10")
            a(f"v_and_b32 v10, 0xffff0000, v10")
            a(f"v_rcp_f32 v10, v10")
            for i in range(5):
                a(f"v_cvt_pk_bf16_f32 v{OPK+i}, v{d+2*i}, v{d+2*i+1}")
            for i in range(5):
                a(f"v_lshlrev_b32 v{d+2*i}, 16, v{OPK+i}")
                a(f"v_and_b32 v{d+2*i+1}, 0xffff0000, v{OPK+i}")
            for i in range(10):
                a(f"v_mul_f32 v{d+i}, v{d+i}, v10")
            for i in range(5):
                a(f"v_cvt_pk_bf16_f32 v{OPK+5+i}, v{d+2*i}, v{d+2*i+1}")
            for i in range(5):
                rho = 5*h + i
                a(f"ds_write_b32 v6, v{OPK+5+i} offset:{((rho//4)*2+tau)*1024 + 4*(rho%4)}")
    ST2.stamp(a, 'ophase', 2)
    XR, ST = 26, 34
    a(f"""
s_lshl_b32 s66, s{S_RBK}, 6
s_lshl_b32 s67, s46, 5
s_add_u32 s66, s66, s67
v_and_b32 v10, 31, v{V_LANE}
v_add_u32 v10, s66, v10                ; token
v_lshlrev_b32 v11, 3, v10
s_mov_b32 s67, {WS_STATS}
buffer_load_dwordx2 v[{ST}:{ST+1}], v11, s[{S_WS}:{S_WS+3}], s67 offen
s_movk_i32 s67, 1280
v_mul_lo_u32 v7, v10, s67
s_lshl_b32 s67, s{S_CB}, 8
s_lshl_b32 s69, s45, 6
s_add_u32 s67, s67, s69
v_lshrrev_b32 v11, 5, v{V_LANE}
v_lshlrev_b32 v11, 5, v11
v_add3_u32 v7, v7, v11, s67
buffer_load_dwordx4 v[{XR}:{XR+3}], v7, s[{S_X}:{S_X+3}], 0 offen
buffer_load_dwordx4 v[{XR+4}:{XR+7}], v7, s[{S_X}:{S_X+3}], 0 offen offset:16
v_mov_b32 v8, v10
s_waitcnt vmcnt(3) lgkmcnt(0)
s_barrier
s_mul_i32 s66, s46, 40960
v_lshlrev_b32 v6, 4, v{V_LANE}
v_add_u32 v6, s66, v6
""")
    BF = 36
    def rd(k, buf):
        a(f"ds_read_b128 v[{BF+8*buf}:{BF+8*buf+3}], v6 offset:{2048*k}")
        a(f"ds_read_b128 v[{BF+8*buf+4}:{BF+8*buf+7}], v6 offset:{2048*k+1024}")
    rd(0, 0)
    for k in range(20):
        if k < 19:
            rd(k+1, (k+1)&1)
            a("s_waitcnt lgkmcnt(2)")
        else:
            a("s_waitcnt lgkmcnt(0)")
        b = BF + 8*(k&1)
        for tau in range(2):
            c = f"v[{DAC+16*tau}:{DAC+16*tau+15}]" if k > 0 else "0"
            a(f"v_mfma_f32_32x32x16_bf16 v[{DAC+16*tau}:{DAC+16*tau+15}], v[{WOF_(k)}:{WOF_(k)+3}], v[{b+4*tau}:{b+4*tau+3}], {c}")
    ST2.stamp(a, 'gemm', 3)
    a(f"""
s_nop 7
s_nop 3
s_lshl_b32 s66, s{S_WAVE}, 12
s_add_u32 s66, s66, {L_RED}
v_lshlrev_b32 v6, 4, v{V_LANE}
v_add_u32 v6, s66, v6
s_xor_b32 s67, s{S_WAVE}, 4
s_lshl_b32 s67, s67, 12
s_add_u32 s67, s67, {L_RED}
v_lshlrev_b32 v9, 4, v{V_LANE}
v_add_u32 v9, s67, v9
s_cmp_eq_u32 s46, 0
s_cbranch_scc0 K2_ETA1
""")
    for q in range(4):
        a(f"ds_write_b128 v6, v[{DAC+16+4*q}:{DAC+16+4*q+3}] offset:{1024*q}")
    a("s_branch K2_ETA_J")
    a("K2_ETA1:")
    for q in range(4):
        a(f"ds_write_b128 v6, v[{DAC+4*q}:{DAC+4*q+3}] offset:{1024*q}")
    for q in range(16):
        a(f"v_mov_b32 v{DAC+q}, v{DAC+16+q}")
    a("K2_ETA_J:")
    a("s_waitcnt lgkmcnt(0)")
    a("s_barrier")
    RD = 52
    for q in range(4):
        a(f"ds_read_b128 v[{RD+4*q}:{RD+4*q+3}], v9 offset:{1024*q}")
    emit_idx(a, 's_waitcnt lgkmcnt(0)')
    for q in range(16):
        a(f"v_add_f32 v{DAC+q}, v{DAC+q}, v{RD+q}")
    Y = 120
    for q in range(16):
        a(f"v_mov_b32 v{Y+q}, 0")
    a(f"""
s_lshl_b32 s66, s{S_RBK}, 6
s_lshl_b32 s67, s46, 5
s_add_u32 s66, s66, s67
s_sub_u32 s67, s{S_IDX}, s66
s_cmp_ge_u32 s67, 32
s_cbranch_scc1 K2_NOOWN
v_mov_b32 v10, 0
K2_POLL:
buffer_load_dword v11, v10, s[{S_DBG}:{S_DBG+3}], 0 offen sc0 sc1
s_waitcnt vmcnt(0)
s_nop 0
v_readfirstlane_b32 s69, v11
s_nop 3
s_cmp_ge_u32 s69, {NAUX}
s_cbranch_scc1 K2_POLLED
s_sleep 2
s_branch K2_POLL
K2_POLLED:
v_and_b32 v10, 31, v{V_LANE}
v_lshlrev_b32 v10, 2, v10
v_lshrrev_b32 v11, 5, v{V_LANE}
v_mul_u32_u24 v11, 61440, v11
v_add_u32 v10, v10, v11
s_lshl_b32 s69, s{S_CB}, 9
s_lshl_b32 s70, s45, 7
s_add_u32 s69, s69, s70
s_add_u32 s69, s69, {WS_YPART}
""")
    for p in range(24):
        a(f"s_add_u32 s70, s69, {2560*p}")
        a(f"buffer_load_dword v{80+p}, v10, s[{S_WS}:{S_WS+3}], s70 offen sc0 sc1")
    a("s_waitcnt vmcnt(0)")
    for p in range(1, 24):
        a(f"v_add_f32 v80, v80, v{80+p}")
    a(f"""
v_mov_b32 v81, v80
s_nop 1
v_permlane32_swap_b32 v80, v81
s_nop 1
v_add_f32 v80, v80, v81
v_cvt_pk_bf16_f32 v80, v80, v80
v_and_b32 v80, 0xffff0000, v80
; r_sel
s_and_b32 s69, s{S_KEY}, 0xffff0000
s_xor_b32 s70, s69, 0x80000000
s_not_b32 s71, s69
s_and_b32 s71, s71, 0xffff0000
s_cmp_lt_i32 s69, 0
s_cselect_b32 s69, s70, s71         ; r bits
v_mov_b32 v81, s69
v_mul_f32 v81, 0xbfb8aa3b, v81
v_exp_f32 v81, v81
s_nop 0
v_add_f32 v81, 1.0, v81
v_rcp_f32 v81, v81
s_nop 0
v_cvt_pk_bf16_f32 v81, v81, v81
v_and_b32 v81, 0xffff0000, v81
v_mul_f32 v80, v80, v81
v_cvt_pk_bf16_f32 v80, v80, v80
v_and_b32 v80, 0xffff0000, v80
s_lshl_b32 s69, s{S_WAVE}, 8
v_and_b32 v10, 31, v{V_LANE}
v_lshlrev_b32 v10, 2, v10
v_add_u32 v10, s69, v10
ds_write_b32 v10, v80
v_lshrrev_b32 v11, 5, v{V_LANE}
v_lshlrev_b32 v11, 6, v11
v_add_u32 v11, s69, v11
s_waitcnt lgkmcnt(0)
ds_read_b128 v[{Y}:{Y+3}], v11
ds_read_b128 v[{Y+4}:{Y+7}], v11 offset:16
ds_read_b128 v[{Y+8}:{Y+11}], v11 offset:32
ds_read_b128 v[{Y+12}:{Y+15}], v11 offset:48
s_waitcnt lgkmcnt(0)
v_cmp_eq_u32 vcc, s{S_IDX}, v8
s_nop 1
""")
    for q in range(16):
        a(f"v_cndmask_b32 v{Y+q}, 0, v{Y+q}, vcc")
    a("K2_NOOWN:")
    ST2.stamp(a, 'moe', 4)
    a("s_waitcnt vmcnt(0)")
    T = 140
    a(f"v_sub_f32 v{T+20}, 0, v{ST}")
    for q in range(8):
        xr = XR + q
        x0, x1 = T, T+1
        a(f"v_lshlrev_b32 v{x0}, 16, v{xr}")
        a(f"v_and_b32 v{x1}, 0xffff0000, v{xr}")
        a(f"v_cvt_pk_bf16_f32 v{T+2}, v{DAC+2*q}, v{DAC+2*q+1}")
        a(f"v_lshlrev_b32 v{T+3}, 16, v{T+2}")
        a(f"v_and_b32 v{T+4}, 0xffff0000, v{T+2}")
        a(f"v_add_f32 v{T+3}, v{x0}, v{T+3}")
        a(f"v_add_f32 v{T+4}, v{x1}, v{T+4}")
        a(f"v_cvt_pk_bf16_f32 v{T+2}, v{T+3}, v{T+4}")
        a(f"v_lshlrev_b32 v{T+3}, 16, v{T+2}")
        a(f"v_and_b32 v{T+4}, 0xffff0000, v{T+2}")
        a(f"v_add_f32 v{x0}, v{x0}, v{T+20}")
        a(f"v_add_f32 v{x1}, v{x1}, v{T+20}")
        a(f"v_cvt_pk_bf16_f32 v{T+5}, v{x0}, v{x1}")
        a(f"v_lshlrev_b32 v{x0}, 16, v{T+5}")
        a(f"v_and_b32 v{x1}, 0xffff0000, v{T+5}")
        a(f"v_mul_f32 v{x0}, v{x0}, v{ST+1}")
        a(f"v_mul_f32 v{x1}, v{x1}, v{ST+1}")
        a(f"v_cvt_pk_bf16_f32 v{T+5}, v{x0}, v{x1}")
        a(f"v_lshlrev_b32 v{x0}, 16, v{T+5}")
        a(f"v_and_b32 v{x1}, 0xffff0000, v{T+5}")
        a(f"v_add_f32 v{x0}, v{x0}, v{Y+2*q}")
        a(f"v_add_f32 v{x1}, v{x1}, v{Y+2*q+1}")
        a(f"v_cvt_pk_bf16_f32 v{T+5}, v{x0}, v{x1}")
        a(f"v_lshlrev_b32 v{x0}, 16, v{T+5}")
        a(f"v_and_b32 v{x1}, 0xffff0000, v{T+5}")
        a(f"v_add_f32 v{x0}, v{x0}, v{T+3}")
        a(f"v_add_f32 v{x1}, v{x1}, v{T+4}")
        a(f"v_cvt_pk_bf16_f32 v{T+8+q}, v{x0}, v{x1}")
    a(f"buffer_store_dwordx4 v[{T+8}:{T+11}], v7, s[{S_OUT}:{S_OUT+3}], 0 offen")
    a(f"buffer_store_dwordx4 v[{T+12}:{T+15}], v7, s[{S_OUT}:{S_OUT+3}], 0 offen offset:16")
    ST2.stamp(a, 'end', 5)
    ST2.flush(a, S_WS, WS_TS2, S_WAVE, "K2_TSF_M")
    a("s_branch K2_END")

def gen_aux(a):
    GW, UW, DW = 16, 36, 56
    L_XN, L_P, L_H, L_Y = 0, 4096, 8192, 12288
    a(f"""
v_lshrrev_b32 v10, 2, v0
s_movk_i32 s38, 3072
v_mul_lo_u32 v11, v10, s38
v_and_b32 v12, 3, v0
v_lshlrev_b32 v12, 4, v12
s_lshl_b32 s39, s2, 6
v_add3_u32 v2, v11, v12, s39
""")
    for i in range(5):
        a(f"s_mov_b32 s40, {i*128*3072}")
        a(f"buffer_load_dwordx4 v[{GW+4*i}:{GW+4*i+3}], v2, s[{S_G}:{S_G+3}], s40 offen")
        a(f"buffer_load_dwordx4 v[{UW+4*i}:{UW+4*i+3}], v2, s[{S_U}:{S_U+3}], s40 offen")
    a(f"""
; down: t<320: chunk = t%80 ; rgd = t/80 ; rows 32a + 8 rgd + i
v_mul_u32_u24 v11, 205, v0
v_lshrrev_b32 v11, 14, v11          ; t/80 (205/16384=0.012512) 
v_mul_u32_u24 v12, 80, v11
v_sub_u32 v12, v0, v12              ; chunk
v_lshlrev_b32 v13, 3, v11
s_lshl_b32 s39, s2, 5
v_add_u32 v13, s39, v13             ; row0
s_movk_i32 s38, 1280
v_mul_lo_u32 v13, v13, s38
v_lshlrev_b32 v14, 4, v12
v_add_u32 v3, v13, v14
v_mov_b32 v4, v11                   ; rgd
v_mov_b32 v5, v12                   ; chunk
s_cmp_ge_u32 s{S_WAVE}, 5
s_cbranch_scc1 K2A_NODL
""")
    for i in range(8):
        a(f"buffer_load_dwordx4 v[{DW+4*i}:{DW+4*i+3}], v3, s[{S_D}:{S_D+3}], 0 offen offset:{1280*(i%3)}" if False else
          f"s_mov_b32 s40, {1280*i}\nbuffer_load_dwordx4 v[{DW+4*i}:{DW+4*i+3}], v3, s[{S_D}:{S_D+3}], s40 offen")
    a("K2A_NODL:")
    ST2.stamp(a, 'issued', 1)
    emit_idx(a, 's_waitcnt vmcnt(18)')
    ST2.stamp(a, 'idx', 2)
    a(f"""
s_cmp_ge_u32 s{S_WAVE}, 2
s_cbranch_scc1 K2A_NOX
s_mul_i32 s38, s{S_IDX}, 1280
v_lshlrev_b32 v10, 4, v0
s_lshl_b32 s39, s{S_IDX}, 3
s_add_u32 s39, s39, {WS_STATS}
v_mov_b32 v11, 0
buffer_load_dwordx4 v[96:99], v10, s[{S_X}:{S_X+3}], s38 offen
buffer_load_dwordx2 v[100:101], v11, s[{S_WS}:{S_WS+3}], s39 offen
s_waitcnt vmcnt(0)
v_sub_f32 v102, 0, v100
""")
    for q in range(4):
        a(f"v_lshlrev_b32 v{104+2*q}, 16, v{96+q}")
        a(f"v_and_b32 v{105+2*q}, 0xffff0000, v{96+q}")
    for q in range(8):
        a(f"v_add_f32 v{104+q}, v{104+q}, v102")
    for q in range(4):
        a(f"v_cvt_pk_bf16_f32 v{96+q}, v{104+2*q}, v{105+2*q}")
    for q in range(4):
        a(f"v_lshlrev_b32 v{104+2*q}, 16, v{96+q}")
        a(f"v_and_b32 v{105+2*q}, 0xffff0000, v{96+q}")
    for q in range(8):
        a(f"v_mul_f32 v{104+q}, v{104+q}, v101")
    for q in range(4):
        a(f"v_cvt_pk_bf16_f32 v{96+q}, v{104+2*q}, v{105+2*q}")
    for q in range(4):
        a(f"v_lshlrev_b32 v{104+2*q}, 16, v{96+q}")
        a(f"v_and_b32 v{105+2*q}, 0xffff0000, v{96+q}")
    a(f"""
v_lshlrev_b32 v10, 5, v0
v_cmp_gt_u32 vcc, 80, v0
s_and_saveexec_b64 s[64:65], vcc
ds_write_b128 v10, v[104:107] offset:{L_XN}
ds_write_b128 v10, v[108:111] offset:{L_XN+16}
s_mov_b64 exec, s[64:65]
K2A_NOX:
s_waitcnt vmcnt(0) lgkmcnt(0)
s_barrier
""")
    ST2.stamp(a, 'xn', 3)
    a(f"""
v_lshrrev_b32 v10, 2, v0
v_lshlrev_b32 v10, 2, v10          ; rg*4
""")
    for i in range(5):
        a(f"ds_read_b32 v{96+i}, v10 offset:{L_XN + 512*i}")
    AG, AU = 104, 112
    for q in range(16):
        a(f"v_mov_b32 v{AG+q}, 0")
    a("s_waitcnt lgkmcnt(0)")
    for i in range(5):
        for (W, A) in ((GW, AG), (UW, AU)):
            for q in range(4):
                a(f"v_lshlrev_b32 v120, 16, v{W+4*i+q}")
                a(f"v_and_b32 v121, 0xffff0000, v{W+4*i+q}")
                a(f"v_fmac_f32 v{A+2*q}, v120, v{96+i}")
                a(f"v_fmac_f32 v{A+2*q+1}, v121, v{96+i}")
    for q in range(16):
        a("s_nop 1")
        a(f"v_add_f32_dpp v{AG+q}, v{AG+q}, v{AG+q} row_ror:4 row_mask:0xf bank_mask:0xf")
    for q in range(16):
        a("s_nop 1")
        a(f"v_add_f32_dpp v{AG+q}, v{AG+q}, v{AG+q} row_ror:8 row_mask:0xf bank_mask:0xf")
    for sw in ("v_permlane16_swap_b32", "v_permlane32_swap_b32"):
        for q in range(16):
            a(f"v_mov_b32 v{124+q}, v{AG+q}")
        a("s_nop 1")
        for q in range(16):
            a(f"{sw} v{AG+q}, v{124+q}")
        a("s_nop 1")
        for q in range(16):
            a(f"v_add_f32 v{AG+q}, v{AG+q}, v{124+q}")
    a(f"""
s_lshl_b32 s38, s{S_WAVE}, 8
v_lshlrev_b32 v10, 5, v{V_LANE}
v_add_u32 v10, s38, v10
s_mov_b64 exec, 0xf
ds_write_b128 v10, v[{AG}:{AG+3}] offset:{L_P}
ds_write_b128 v10, v[{AG+4}:{AG+7}] offset:{L_P+16}
ds_write_b128 v10, v[{AU}:{AU+3}] offset:{L_P+128}
ds_write_b128 v10, v[{AU+4}:{AU+7}] offset:{L_P+144}
s_mov_b64 exec, -1
s_waitcnt lgkmcnt(0)
s_barrier
s_cmp_lg_u32 s{S_WAVE}, 0
s_cbranch_scc1 K2A_NOH
v_and_b32 v10, 31, v{V_LANE}
v_lshlrev_b32 v10, 2, v10
""")
    for w in range(8):
        a(f"ds_read_b32 v{96+w}, v10 offset:{L_P + 256*w}")
        a(f"ds_read_b32 v{104+w}, v10 offset:{L_P + 256*w + 128}")
    a("s_waitcnt lgkmcnt(0)")
    for w in range(1, 8):
        a(f"v_add_f32 v96, v96, v{96+w}")
        a(f"v_add_f32 v104, v104, v{104+w}")
    a(f"""
v_cvt_pk_bf16_f32 v97, v96, v104
v_lshlrev_b32 v96, 16, v97            ; g_b
v_and_b32 v104, 0xffff0000, v97       ; u_b
v_mul_f32 v98, 0xbfb8aa3b, v96
v_exp_f32 v98, v98
s_nop 0
v_add_f32 v98, 1.0, v98
v_rcp_f32 v98, v98
s_nop 0
v_mul_f32 v98, v96, v98               ; silu
v_cvt_pk_bf16_f32 v98, v98, v98
v_and_b32 v98, 0xffff0000, v98
v_mul_f32 v98, v98, v104
v_cvt_pk_bf16_f32 v98, v98, v98
v_and_b32 v98, 0xffff0000, v98        ; h
s_mov_b32 exec_hi, 0
ds_write_b32 v10, v98 offset:{L_H}
s_mov_b64 exec, -1
K2A_NOH:
s_waitcnt lgkmcnt(0)
s_barrier
""")
    ST2.stamp(a, 'h', 4)
    a(f"""
s_cmp_ge_u32 s{S_WAVE}, 5
s_cbranch_scc1 K2A_NOD
v_lshlrev_b32 v10, 5, v4             ; rgd*8*4
ds_read_b128 v[96:99], v10 offset:{L_H}
ds_read_b128 v[100:103], v10 offset:{L_H+16}
""")
    for q in range(8):
        a(f"v_mov_b32 v{104+q}, 0")
    a("s_waitcnt lgkmcnt(0)")
    for i in range(8):
        for q in range(4):
            a(f"v_lshlrev_b32 v120, 16, v{DW+4*i+q}")
            a(f"v_and_b32 v121, 0xffff0000, v{DW+4*i+q}")
            a(f"v_fmac_f32 v{104+2*q}, v120, v{96+i}")
            a(f"v_fmac_f32 v{105+2*q}, v121, v{96+i}")
    a(f"""
v_mul_u32_u24 v10, 2560, v4
v_lshlrev_b32 v11, 5, v5
v_add_u32 v10, v10, v11
ds_write_b128 v10, v[104:107] offset:{L_Y}
ds_write_b128 v10, v[108:111] offset:{L_Y+16}
K2A_NOD:
s_waitcnt lgkmcnt(0)
s_barrier
s_cmp_ge_u32 s{S_WAVE}, 3
s_cbranch_scc1 K2A_NOS
v_lshlrev_b32 v10, 4, v0
ds_read_b128 v[96:99], v10 offset:{L_Y}
ds_read_b128 v[100:103], v10 offset:{L_Y+2560}
ds_read_b128 v[104:107], v10 offset:{L_Y+5120}
ds_read_b128 v[108:111], v10 offset:{L_Y+7680}
s_waitcnt lgkmcnt(0)
""")
    for q in range(4):
        a(f"v_add_f32 v{96+q}, v{96+q}, v{100+q}")
        a(f"v_add_f32 v{104+q}, v{104+q}, v{108+q}")
        a(f"v_add_f32 v{96+q}, v{96+q}, v{104+q}")
    a(f"""
s_mul_i32 s38, s2, 2560
s_add_u32 s38, s38, {WS_YPART}
v_cmp_gt_u32 vcc, 160, v0
s_and_saveexec_b64 s[64:65], vcc
buffer_store_dwordx4 v[96:99], v10, s[{S_WS}:{S_WS+3}], s38 offen sc0 sc1
s_mov_b64 exec, s[64:65]
s_waitcnt vmcnt(0)
K2A_NOS:
s_barrier
s_cmp_lg_u32 s{S_WAVE}, 0
s_cbranch_scc1 K2_END
v_mov_b32 v10, 0
v_mov_b32 v11, 1
s_mov_b64 exec, 1
buffer_atomic_add v11, v10, s[{S_DBG}:{S_DBG+3}], 0 offen
s_mov_b64 exec, -1
""")
    ST2.stamp(a, 'end', 5)
    ST2.flush(a, S_WS, WS_TS2, S_WAVE, "K2_TSF_A")
    a("s_branch K2_END")
```

```python
import sys
from common import *
import k1c as k1
import k0
def main(out, with_k2=True):
    hdr = open('parallel_sum__linear_kernel_hedgehog__moe_arch_mod__prompt.s.ref').read().split("\n")
    top = [l for l in hdr if l.startswith(";") and "@launch" not in l]
    lead = []
    for l in hdr:
        if l.startswith(";"):
            if "@launch" in l: continue
            lead.append(l)
        else:
            break
    s = "\n".join(lead) + "\n"
    s += f"; @launch kernel=k0_kernel grid=({k0.K0_GRID},1,1) block=({k0.K0_BLOCK},1,1) lds={k0.K0_LDS}\n"
    s += f"; @launch kernel=k1_kernel grid=(256,1,1) block=({k1.K1_BLOCK},1,1) lds={k1.K1_LDS}\n"
    if with_k2:
        import k2
        s += f"; @launch kernel=k2_kernel grid=({k2.K2_GRID},1,1) block=(512,1,1) lds={k2.K2_LDS}\n"
    s += '.amdgcn_target "amdgcn-amd-amdhsa--gfx950"\n.text\n'
    s += k0.gen_k0()
    s += k1.gen_k1()
    if with_k2:
        s += k2.gen_k2()
    s += '.section .rodata,"a"\n'
    s += kdesc("k0_kernel", k0.K0_VGPR)
    s += kdesc("k1_kernel", k1.K1_VGPR, accoff=getattr(k1, "K1_ACCOFF", None))
    if with_k2:
        s += kdesc("k2_kernel", k2.K2_VGPR)
    open(out, "w").write(s)
if __name__ == "__main__":
    main(sys.argv[1], len(sys.argv) < 3)
```

```python
from common import *
import os
L_W = 0
L_WPHI = 155648
L_ZERO = 157248
L_EX = 0
L_KVO = 40960
EXP = 288
K1_LDS = 158144
K1_BLOCK = 256
K1_VGPR = 256 + 160
K1_ACCOFF = 256
ROT_A = int(os.environ.get('ROT_A', '0')); ROT_B = int(os.environ.get('ROT_B', '0'))
S_WPHI, S_WS = 4, 8
S_RB, S_PAIR, S_WAVE, S_ROT = 32, 33, 37, 73
S_L2E = 44
V_LANE = 1
ACC = 16
WA, WBB = 80, 112
ST1 = Stamper(74, 14)

def emit_softmax(a, P, touch=None):
    PKD, EM, OUT = 144, 164, 184
    for i in range(10):
        a(f"v_cvt_pk_bf16_f32 v{PKD+i}, v{P+2*i}, v{P+2*i+1}")
    for i in range(10):
        a(f"v_lshlrev_b32 v{P+2*i}, 16, v{PKD+i}")
        a(f"v_and_b32 v{P+2*i+1}, 0xffff0000, v{PKD+i}")
    MX, MN = 154, 155
    a(f"v_max3_f32 v{MX}, v{P}, v{P+1}, v{P+2}")
    a(f"v_min3_f32 v{MN}, v{P}, v{P+1}, v{P+2}")
    for i in range(3, 19, 2):
        a(f"v_max3_f32 v{MX}, v{MX}, v{P+i}, v{P+i+1}")
        a(f"v_min3_f32 v{MN}, v{MN}, v{P+i}, v{P+i+1}")
    a(f"v_max_f32 v{MX}, v{MX}, v{P+19}")
    a(f"v_min_f32 v{MN}, v{MN}, v{P+19}")
    AP, AM = 156, 158
    a(f"v_mul_f32 v{AP}, s{S_L2E}, v{MX}")
    a(f"v_mul_f32 v{AM}, s{S_L2E}, v{MN}")
    a(f"v_mov_b32 v{AP+1}, v{AP}")
    a(f"v_mov_b32 v{AM+1}, v{AM}")
    for i in range(10):
        a(f"v_pk_fma_f32 v[{EM+2*i}:{EM+2*i+1}], v[{P+2*i}:{P+2*i+1}], s[{S_L2E}:{S_L2E+1}], v[{AM}:{AM+1}] neg_lo:[1,0,0] neg_hi:[1,0,0]")
        a(f"v_pk_fma_f32 v[{P+2*i}:{P+2*i+1}], v[{P+2*i}:{P+2*i+1}], s[{S_L2E}:{S_L2E+1}], v[{AP}:{AP+1}] neg_lo:[0,0,1] neg_hi:[0,0,1]")
    for i in range(20):
        a(f"v_exp_f32 v{EM+i}, v{EM+i}")
        a(f"v_exp_f32 v{P+i}, v{P+i}")
        if touch and i in (6, 13): touch(1)
    SP, SM = 156, 158
    a("s_nop 0")
    a(f"v_pk_add_f32 v[{SM}:{SM+1}], v[{EM}:{EM+1}], v[{EM+2}:{EM+3}]")
    a(f"v_pk_add_f32 v[{SP}:{SP+1}], v[{P}:{P+1}], v[{P+2}:{P+3}]")
    for i in range(2, 10):
        a(f"v_pk_add_f32 v[{SM}:{SM+1}], v[{SM}:{SM+1}], v[{EM+2*i}:{EM+2*i+1}]")
        a(f"v_pk_add_f32 v[{SP}:{SP+1}], v[{SP}:{SP+1}], v[{P+2*i}:{P+2*i+1}]")
    a(f"v_add_f32 v{SM}, v{SM}, v{SM+1}")
    a(f"v_add_f32 v{SP}, v{SP}, v{SP+1}")
    a(f"v_rcp_f32 v{SM}, v{SM}")
    a(f"v_rcp_f32 v{SP}, v{SP}")
    a("s_nop 0")
    a(f"v_mov_b32 v{SM+1}, v{SM}")
    a(f"v_mov_b32 v{SP+1}, v{SP}")
    for i in range(10):
        a(f"v_pk_mul_f32 v[{P+2*i}:{P+2*i+1}], v[{P+2*i}:{P+2*i+1}], v[{SP}:{SP+1}]")
        a(f"v_pk_mul_f32 v[{EM+2*i}:{EM+2*i+1}], v[{EM+2*i}:{EM+2*i+1}], v[{SM}:{SM+1}]")
    for i in range(10):
        a(f"v_cvt_pk_bf16_f32 v{OUT+i}, v{P+2*i}, v{P+2*i+1}")
    for i in range(10):
        a(f"v_cvt_pk_bf16_f32 v{OUT+10+i}, v{EM+2*i}, v{EM+2*i+1}")
    return OUT

def gen_k1():
    a = Asm()
    a.lines.append(kstart("k1_kernel"))
    ST1.stamp(a, 'entry', 0)
    a(f"""
s_cmp_ge_u32 s2, 256
s_cbranch_scc1 K1_END
s_load_dwordx2 s[52:53], s[0:1], 16
s_load_dwordx4 s[24:27], s[0:1], 48
s_load_dwordx2 s[28:29], s[0:1], 64
s_load_dwordx4 s[60:63], s[0:1], 80
v_and_b32 v{V_LANE}, 63, v0
v_lshrrev_b32 v10, 6, v0
s_nop 0
v_readfirstlane_b32 s{S_WAVE}, v10
s_and_b32 s38, s2, 7
s_lshr_b32 s39, s2, 3
s_and_b32 s40, s38, 3
s_lshl_b32 s40, s40, 2
s_and_b32 s41, s39, 3
s_add_u32 s{S_RB}, s40, s41
s_lshr_b32 s42, s38, 2
s_lshr_b32 s41, s39, 2            ; pl
s_lshl_b32 s40, s42, 3
s_add_u32 s{S_PAIR}, s40, s41
s_and_b32 s40, s39, 3
s_mul_i32 s40, s40, {ROT_A}
s_mul_i32 s{S_ROT}, s41, {ROT_B}
s_add_u32 s{S_ROT}, s{S_ROT}, s40
s_mul_i32 s40, s{S_ROT}, 13108
s_lshr_b32 s40, s40, 16
s_mul_i32 s40, s40, 5
s_sub_u32 s{S_ROT}, s{S_ROT}, s40
s_mov_b32 s{S_L2E}, 0x3fb8aa3b
s_mov_b32 s{S_L2E+1}, 0x3fb8aa3b
s_waitcnt lgkmcnt(0)
s_mov_b32 s{S_WPHI}, s52
s_mov_b32 s{S_WPHI+1}, s53
s_mov_b32 s{S_WPHI+2}, 25600
s_mov_b32 s{S_WPHI+3}, 0x20000
s_mov_b32 s{S_WS}, s62
s_mov_b32 s{S_WS+1}, s63
s_mov_b32 s{S_WS+2}, {WS_BYTES}
s_mov_b32 s{S_WS+3}, 0x20000
v_lshlrev_b32 v2, 4, v{V_LANE}
s_lshl_b32 s38, s{S_RB}, 3
s_lshl_b32 s39, s{S_WAVE}, 1
s_add_u32 s38, s38, s39
s_mul_i32 s46, s38, 20480
s_add_u32 s46, s46, {WS_XNF}
s_mul_i32 s47, s{S_PAIR}, 153600
s_add_u32 s47, s47, {WS_WPF}
s_lshl_b32 s72, s{S_WAVE}, 10
s_mov_b32 s40, s{S_ROT}
""")
    for g in range(5):
        a(f"s_lshl_b32 s41, s40, 12")
        a(f"s_add_u32 s{48+2*g}, s41, s46")
        a(f"s_mul_i32 s41, s40, 30720")
        a(f"s_add_u32 s41, s41, s47")
        a(f"s_add_u32 s{49+2*g}, s41, s72")
        a("s_add_u32 s40, s40, 1")
        a("s_cmp_eq_u32 s40, 5")
        a("s_cselect_b32 s40, 0, s40")
    def issue_part(g, j):
        a(f"buffer_load_dwordx4 a[{16*g+4*j}:{16*g+4*j+3}], v2, s[{S_WS}:{S_WS+3}], s{48+2*g} offen offset:{1024*j}")
        a(f"s_add_u32 s41, s{48+2*g}, 20480")
        a(f"buffer_load_dwordx4 a[{80+16*g+4*j}:{80+16*g+4*j+3}], v2, s[{S_WS}:{S_WS+3}], s41 offen offset:{1024*j}")
        for e in range(2):
            c = 2*j + e
            if c == 7:
                a(f"s_cmp_ge_u32 s{S_WAVE}, 2")
                a(f"s_cbranch_scc1 K1_SKIPC{g}")
            a(f"s_add_u32 m0, s72, {30720*g + 4096*c}")
            a(f"s_add_u32 s41, s{49+2*g}, {4096*c}")
            a(f"buffer_load_dwordx4 v2, s[{S_WS}:{S_WS+3}], s41 offen lds")
            if c == 7:
                a(f"K1_SKIPC{g}:")
    for g in range(2):
        for j in range(4):
            issue_part(g, j)
        if g == 0: a("s_barrier")
    a(f"""
s_cmp_ge_u32 s{S_WAVE}, 2
s_cbranch_scc1 K1_MISC_Z
s_mul_i32 s38, s{S_PAIR}, 1600
v_lshlrev_b32 v10, 4, v0
s_add_u32 m0, s72, {L_WPHI}
v_cmp_gt_u32 vcc, 100, v0
s_and_saveexec_b64 s[64:65], vcc
buffer_load_dwordx4 v10, s[{S_WPHI}:{S_WPHI+3}], s38 offen lds
s_mov_b64 exec, s[64:65]
s_branch K1_MISC_DONE
K1_MISC_Z:
s_cmp_lg_u32 s{S_WAVE}, 2
s_cbranch_scc1 K1_MISC_DONE
v_mov_b32 v10, 0
v_mov_b32 v11, 0
v_mov_b32 v12, 0
v_mov_b32 v13, 0
v_add_u32 v14, {L_ZERO}, v2
v_cmp_gt_u32 vcc, 56, v{V_LANE}
s_and_saveexec_b64 s[64:65], vcc
ds_write_b128 v14, v[10:13]
s_mov_b64 exec, s[64:65]
K1_MISC_DONE:
v_lshrrev_b32 v3, 4, v{V_LANE}
v_lshlrev_b32 v3, 3, v3
v_bfe_u32 v4, v{V_LANE}, 3, 1
v_lshlrev_b32 v4, 2, v4
v_and_b32 v5, 3, v{V_LANE}
v_add3_u32 v3, v3, v4, v5
v_lshlrev_b32 v3, 4, v3
v_add_u32 v3, 7168, v3
""")
    ST1.stamp(a, 'issued', 1)
    def read_list(s, buf):
        g, j = divmod(s, 4)
        base = 30720*g + 7680*j
        B = WA if buf == 0 else WBB
        L = [f"v_add_u32 v14, {base}, v2\nv_add_u32 v15, {base}, v3\nds_read_b128 v[{B}:{B+3}], v14"]
        for t in range(1, 7):
            L.append(f"ds_read_b128 v[{B+4*t}:{B+4*t+3}], v14 offset:{1024*t}")
        L.append(f"ds_read_b128 v[{B+28}:{B+31}], v15")
        return L
    def issue_list(g, j):
        sub = Asm()
        _a = a
        return sub
    for s in range(20):
        g, j = divmod(s, 4)
        if j == 0:
            younger = 15 if g < 4 else 0
            a(f"s_waitcnt vmcnt({younger}) lgkmcnt(0)")
            a("s_barrier")
            ST1.stamp(a, f'b{g}', 4+g)
            for x in read_list(s, s & 1): a(x)
        nxt = read_list(s+1, (s+1) & 1) if j < 3 else []
        if g + 2 < 5:
            issue_part(g+2, j)
        a("s_waitcnt lgkmcnt(0)")
        B = WA if (s & 1) == 0 else WBB
        for t in range(8):
            for tau in range(2):
                d = ACC + 32*tau + 4*t
                c = f"v[{d}:{d+3}]" if s > 0 else "0"
                a(f"v_mfma_f32_16x16x32_bf16 v[{d}:{d+3}], v[{B+4*t}:{B+4*t+3}], a[{80*tau+4*s}:{80*tau+4*s+3}], {c}")
            if nxt and t < 4:
                a(nxt[2*t]); a(nxt[2*t+1])
    ST1.stamp(a, 'kloop1', 9)
    TOUCH = os.environ.get("TOUCH", "1") == "1"
    tl = []
    if TOUCH:
        a(f"""
s_lshr_b32 s41, s2, 3
s_mul_i32 s42, s41, 25600
s_mul_i32 s43, s{S_WAVE}, 6400
s_add_u32 s42, s42, s43
s_add_u32 s66, s42, {WS_WOP}
s_mov_b32 s12, s24
s_mov_b32 s13, s25
s_mov_b32 s14, 1966080
s_mov_b32 s15, 0x20000
s_mov_b32 s16, s26
s_mov_b32 s17, s27
s_mov_b32 s18, 1966080
s_mov_b32 s19, 0x20000
s_mov_b32 s20, s28
s_mov_b32 s21, s29
s_mov_b32 s22, 1966080
s_mov_b32 s23, 0x20000
s_min_u32 s41, s41, 23
s_lshr_b32 s42, s41, 2
s_lshl_b32 s42, s42, 3
s_and_b32 s43, s2, 7
s_add_u32 s42, s42, s43                ; a
s_and_b32 s43, s41, 3
s_mul_i32 s46, s43, 160
s_mul_i32 s47, s{S_WAVE}, 40
s_add_u32 s46, s46, s47
v_lshrrev_b32 v248, 2, v{V_LANE}
v_add_u32 v248, s46, v248
s_movk_i32 s47, 3072
v_mul_lo_u32 v248, v248, s47
v_and_b32 v249, 3, v{V_LANE}
v_lshlrev_b32 v249, 4, v249
s_lshl_b32 s47, s42, 6
v_add3_u32 v248, v248, v249, s47
s_lshl_b32 s46, s42, 5
s_lshl_b32 s47, s43, 3
s_add_u32 s46, s46, s47
s_mul_i32 s46, s46, 1280
s_mul_i32 s47, s{S_WAVE}, 2560
s_add_u32 s67, s46, s47
s_mov_b32 s68, {16*3072}
s_mov_b32 s69, {24*3072}
""")
        for i in range(7):
            tl.append(f"s_add_u32 s70, s66, {1024*i}\nbuffer_load_dwordx4 v[252:255], v2, s[{S_WS}:{S_WS+3}], s70 offen")
        for so in ("0", "s68", "s69"):
            tl.append(f"buffer_load_dwordx4 v[252:255], v248, s[12:15], {so} offen")
            tl.append(f"buffer_load_dwordx4 v[252:255], v248, s[16:19], {so} offen")
        for off in (0, 1024, 1536):
            tl.append(f"buffer_load_dwordx4 v[252:255], v2, s[20:23], s67 offen offset:{off}")
    def touch(n):
        for _ in range(n):
            if tl: a(tl.pop(0))
    a(f"""
v_and_b32 v9, 15, v{V_LANE}
v_mul_u32_u24 v10, {EXP}, v9          ; tok16*EXP
v_lshrrev_b32 v11, 4, v{V_LANE}       ; quad
v_lshrrev_b32 v12, 1, v11
v_mul_u32_u24 v12, 40, v12
v_and_b32 v13, 1, v11
v_lshlrev_b32 v13, 3, v13
v_add3_u32 v12, v12, v13, v10
v_add_u32 v12, 160, v12
v_mul_u32_u24 v13, 80, v11
v_add_u32 v13, v13, v10
v_subrev_u32 v13, 160, v13
v_and_b32 v14, 3, v{V_LANE}
v_bfe_u32 v15, v{V_LANE}, 2, 2
v_mul_u32_u24 v15, 40, v15
v_and_b32 v8, 1, v11
v_mul_u32_u24 v8, 800, v8
v_add_u32 v15, v15, v8
v_add_u32 v15, {L_WPHI}, v15
v_mov_b32 v8, {L_ZERO}
v_cmp_eq_u32 vcc, v14, v11
s_nop 1
v_cndmask_b32 v15, v8, v15, vcc
v_mul_u32_u24 v7, 1280, v11
v_lshlrev_b32 v9, 4, v9
v_add_u32 v7, v7, v9
s_barrier
""")
    for tau in range(2):
        A0 = ACC + 32*tau
        PB, VP = 204, 216
        for t in range(5):
            a(f"v_cvt_pk_bf16_f32 v{PB+2*t}, v{A0+4*t}, v{A0+4*t+1}")
            a(f"v_cvt_pk_bf16_f32 v{PB+2*t+1}, v{A0+4*t+2}, v{A0+4*t+3}")
        a(f"v_mov_b32 v{PB+10}, 0")
        a(f"v_mov_b32 v{PB+11}, 0")
        for t in range(3):
            a(f"v_cvt_pk_bf16_f32 v{VP+2*t}, v{A0+20+4*t}, v{A0+20+4*t+1}")
            a(f"v_cvt_pk_bf16_f32 v{VP+2*t+1}, v{A0+20+4*t+2}, v{A0+20+4*t+3}")
        a(f"""
s_lshl_b32 s39, s{S_WAVE}, 1
s_add_u32 s39, s39, {tau}
s_mul_i32 s38, s39, {16*EXP}
s_add_u32 s38, s38, {L_EX}
v_add_u32 v4, s38, v12
v_add_u32 v5, s38, v13
v_add_u32 v6, s38, v10
""")
        a(f"ds_write_b64 v4, v[{VP}:{VP+1}]")
        a(f"ds_write_b64 v4, v[{VP+2}:{VP+3}] offset:16")
        a("s_mov_b32 exec_lo, 0x0000ffff")
        a("s_mov_b32 exec_hi, 0x0000ffff")
        a(f"ds_write_b64 v4, v[{VP+4}:{VP+5}] offset:32")
        a(f"v_mov_b32 v222, 0x00003f80")
        a(f"v_mov_b32 v223, 0")
        a(f"ds_write_b64 v6, v[222:223] offset:240")
        a("s_mov_b64 exec, -1")
        touch(3)
        AF = 224
        for t in range(5):
            b = AF + 12 * (t & 1)
            for c in range(3):
                a(f"ds_read_b64_tr_b16 v[{b+4*c}:{b+4*c+1}], v15 offset:{(8*c)*40 + 8*t}")
                if c < 2:
                    a(f"ds_read_b64_tr_b16 v[{b+4*c+2}:{b+4*c+3}], v15 offset:{(8*c+4)*40 + 8*t}")
                else:
                    a(f"v_mov_b32 v{b+4*c+2}, 0")
                    a(f"v_mov_b32 v{b+4*c+3}, 0")
            if t > 0:
                pb = AF + 12 * ((t-1) & 1)
                a("s_waitcnt lgkmcnt(5)")
                for c in range(3):
                    cc = "0" if c == 0 else f"v[{A0+4*(t-1)}:{A0+4*(t-1)+3}]"
                    a(f"v_mfma_f32_16x16x32_bf16 v[{A0+4*(t-1)}:{A0+4*(t-1)+3}], v[{pb+4*c}:{pb+4*c+3}], v[{PB+4*c}:{PB+4*c+3}], {cc}")
        a("s_waitcnt lgkmcnt(0)")
        pb = AF
        for c in range(3):
            cc = "0" if c == 0 else f"v[{A0+16}:{A0+19}]"
            a(f"v_mfma_f32_16x16x32_bf16 v[{A0+16}:{A0+19}], v[{pb+4*c}:{pb+4*c+3}], v[{PB+4*c}:{PB+4*c+3}], {cc}")
        a(f"""
s_lshl_b32 s40, s{S_RB}, 3
s_add_u32 s39, s39, s40
s_lshl_b32 s39, s39, 5
s_lshl_b32 s40, s{S_PAIR}, 1
s_add_u32 s39, s39, s40
s_mul_i32 s39, s39, 1280
s_add_u32 s39, s39, {WS_PQ}
s_nop 3
""")
        touch(3)
        OUTR = emit_softmax(a, A0, touch)
        a("s_mov_b32 exec_lo, 0")
        for c in range(5):
            a(f"ds_write_b128 v5, v[{OUTR+4*c}:{OUTR+4*c+3}] offset:{16*c}")
        a("s_mov_b32 exec_lo, -1")
        a("s_mov_b32 exec_hi, 0")
        for c in range(5):
            a(f"buffer_store_dwordx4 v[{OUTR+4*c}:{OUTR+4*c+3}], v7, s[{S_WS}:{S_WS+3}], s39 offen offset:{256*c}")
        a("s_mov_b64 exec, -1")
        a("s_nop 1")
    a("s_waitcnt lgkmcnt(0)")
    a("s_barrier")
    ST1.stamp(a, 'epi1', 10)
    a(f"""
s_lshr_b32 s40, s{S_WAVE}, 1
s_and_b32 s41, s{S_WAVE}, 1
v_lshrrev_b32 v10, 2, v{V_LANE}
v_mul_u32_u24 v10, {EXP}, v10
v_add_u32 v10, {L_EX}, v10
v_and_b32 v11, 3, v{V_LANE}
v_lshlrev_b32 v12, 3, v11
s_mul_i32 s42, s40, 80
v_add3_u32 v13, v10, v12, s42
s_mul_i32 s42, s40, 40
s_add_u32 s42, s42, 160
v_add_u32 v14, s42, v12
s_add_u32 s43, s42, 32
v_mov_b32 v15, 240
v_mov_b32 v9, s43
v_cmp_eq_u32 vcc, 0, v11
s_nop 1
v_cndmask_b32 v15, v15, v9, vcc
s_cmp_eq_u32 s41, 0
s_cselect_b64 vcc, -1, 0
s_nop 1
v_cndmask_b32 v14, v15, v14, vcc
v_add_u32 v14, v14, v10
""")
    KAB = [80, 112]
    def kvreads(ks, KA):
        o = ks * 32 * EXP
        a(f"ds_read_b64_tr_b16 v[{KA}:{KA+1}], v14 offset:{o}")
        a(f"ds_read_b64_tr_b16 v[{KA+2}:{KA+3}], v14 offset:{o + 16*EXP}")
        for Tt in range(3):
            a(f"ds_read_b64_tr_b16 v[{KA+4+4*Tt}:{KA+5+4*Tt}], v13 offset:{o + 32*Tt}")
            a(f"ds_read_b64_tr_b16 v[{KA+6+4*Tt}:{KA+7+4*Tt}], v13 offset:{o + 16*EXP + 32*Tt}")
    kvreads(0, KAB[0])
    for ks in range(4):
        KA = KAB[ks & 1]
        if ks < 3:
            kvreads(ks+1, KAB[(ks+1) & 1])
            a("s_waitcnt lgkmcnt(8)")
        else:
            a("s_waitcnt lgkmcnt(0)")
        for Tt in range(3):
            c = f"v[{ACC+4*Tt}:{ACC+4*Tt+3}]" if ks > 0 else "0"
            a(f"v_mfma_f32_16x16x32_bf16 v[{ACC+4*Tt}:{ACC+4*Tt+3}], v[{KA}:{KA+3}], v[{KA+4+4*Tt}:{KA+7+4*Tt}], {c}")
    a(f"""
v_lshrrev_b32 v10, 4, v{V_LANE}
v_mul_u32_u24 v10, 640, v10
v_and_b32 v11, 15, v{V_LANE}
v_lshlrev_b32 v11, 2, v11
v_add_u32 v10, v10, v11
s_mul_i32 s42, s40, 3360
s_mul_i32 s43, s41, 2560
s_add_u32 s42, s42, s43
s_add_u32 s42, s42, {L_KVO}
v_add_u32 v10, s42, v10
s_cmp_eq_u32 s41, 0
s_cselect_b32 s46, -1, -1
s_cselect_b32 s47, -1, 0
s_cselect_b32 s38, -1, 0xffff
s_cselect_b32 s39, -1, 0
s_mov_b32 s64, 0x00ff00ff
s_mov_b32 s65, 0x00ff00ff
s_nop 4
""")
    for Tt in range(3):
        for i in range(4):
            lo, hi = ("s46", "s47") if i == 0 else ("s38", "s39")
            if Tt < 2:
                a(f"s_mov_b32 exec_lo, {lo}")
                a(f"s_mov_b32 exec_hi, {hi}")
            else:
                a(f"s_and_b32 exec_lo, {lo}, s64")
                a(f"s_and_b32 exec_hi, {hi}, s65")
            a(f"ds_write_b32 v10, v{ACC+4*Tt+i} offset:{160*i + 64*Tt}")
    a(f"""
s_mov_b64 exec, -1
s_waitcnt lgkmcnt(0)
s_barrier
v_lshlrev_b32 v10, 2, v0
v_add_u32 v11, {L_KVO}, v10
""")
    for i in range(7):
        a(f"ds_read_b32 v{16+i}, v11 offset:{1024*i}")
    a(f"s_mul_i32 s42, s{S_PAIR}, 6720")
    a("s_waitcnt lgkmcnt(0)")
    for i in range(6):
        a(f"s_add_u32 s43, s42, {1024*i}")
        a(f"buffer_atomic_add_f32 v{16+i}, v10, s[{S_WS}:{S_WS+3}], s43 offen")
    a(f"""
s_add_u32 s43, s42, 6144
v_cmp_gt_u32 vcc, 144, v0
s_and_saveexec_b64 s[64:65], vcc
s_cbranch_execz K1_AT_DONE
buffer_atomic_add_f32 v22, v10, s[{S_WS}:{S_WS+3}], s43 offen
K1_AT_DONE:
s_mov_b64 exec, s[64:65]
""")
    a(f"""
s_cmp_lg_u32 s2, 0
s_cbranch_scc1 K1_NOKEY
s_cmp_lg_u32 s{S_WAVE}, 3
s_cbranch_scc1 K1_NOKEY
v_lshlrev_b32 v14, 5, v{V_LANE}
s_mov_b32 s64, {WS_AMAX}
buffer_load_dwordx4 v[136:139], v14, s[{S_WS}:{S_WS+3}], s64 offen
buffer_load_dwordx4 v[140:143], v14, s[{S_WS}:{S_WS+3}], s64 offen offset:16
s_waitcnt vmcnt(0)
v_max_u32 v136, v136, v137
v_max_u32 v138, v138, v139
v_max_u32 v140, v140, v141
v_max_u32 v142, v142, v143
v_max_u32 v136, v136, v138
v_max_u32 v140, v140, v142
v_max_u32 v136, v136, v140
s_nop 1
v_max_u32_dpp v136, v136, v136 row_ror:1 row_mask:0xf bank_mask:0xf
s_nop 1
v_max_u32_dpp v136, v136, v136 row_ror:2 row_mask:0xf bank_mask:0xf
s_nop 1
v_max_u32_dpp v136, v136, v136 row_ror:4 row_mask:0xf bank_mask:0xf
s_nop 1
v_max_u32_dpp v136, v136, v136 row_ror:8 row_mask:0xf bank_mask:0xf
v_mov_b32 v137, v136
s_nop 1
v_permlane16_swap_b32 v136, v137
s_nop 1
v_max_u32 v136, v136, v137
v_mov_b32 v137, v136
s_nop 1
v_permlane32_swap_b32 v136, v137
s_nop 1
v_max_u32 v136, v136, v137
v_mov_b32 v14, 0
s_mov_b32 s64, {WS_KEY}
s_mov_b64 exec, 1
buffer_store_dword v136, v14, s[{S_WS}:{S_WS+3}], s64 offen
s_mov_b64 exec, -1
K1_NOKEY:
""")
    ST1.stamp(a, 'kv', 11)
    ST1.stamp(a, 'end', 13)
    ST1.flush(a, S_WS, WS_TS1, S_WAVE, "K1_TSF")
    a("K1_END:")
    a("s_endpgm")
    return a.text()
```

```python
from common import *
K2_GRID = 208
K2_LDS = 114688
K2_VGPR = 256
NAUX = 48
S_X, S_WS, S_DBG, S_OUT, S_G, S_U, S_D = 4, 8, 12, 16, 20, 24, 28
S_WAVE, S_RBK, S_CB, S_IDX, S_KEY = 32, 33, 34, 35, 36
V_LANE = 1
OPK = 16
KVP = 26
PQB = 74
DAC = 202
KVA = 202
def WOF_(k):
    return 122 + 4*k
L_OF = 0
L_RED = 81920

ST2 = Stamper(0, 7, regs=[72,74,76,78,96,98,100])
def gen_k2():
    a = Asm()
    a.lines.append(kstart("k2_kernel"))
    ST2.stamp(a, "entry", 0)
    a(f"""
s_cmp_ge_u32 s2, {K2_GRID}
s_cbranch_scc1 K2_END
s_load_dwordx2 s[48:49], s[0:1], 0
s_load_dwordx4 s[52:55], s[0:1], 48
s_load_dwordx4 s[56:59], s[0:1], 64
s_load_dwordx4 s[60:63], s[0:1], 80
v_and_b32 v{V_LANE}, 63, v0
v_lshrrev_b32 v10, 6, v0
s_nop 0
v_readfirstlane_b32 s{S_WAVE}, v10
s_waitcnt lgkmcnt(0)
s_mov_b32 s{S_X}, s48
s_mov_b32 s{S_X+1}, s49
s_mov_b32 s{S_X+2}, 2621440
s_mov_b32 s{S_X+3}, 0x20000
s_mov_b32 s{S_G}, s52
s_mov_b32 s{S_G+1}, s53
s_mov_b32 s{S_G+2}, 1966080
s_mov_b32 s{S_G+3}, 0x20000
s_mov_b32 s{S_U}, s54
s_mov_b32 s{S_U+1}, s55
s_mov_b32 s{S_U+2}, 1966080
s_mov_b32 s{S_U+3}, 0x20000
s_mov_b32 s{S_D}, s56
s_mov_b32 s{S_D+1}, s57
s_mov_b32 s{S_D+2}, 1966080
s_mov_b32 s{S_D+3}, 0x20000
s_mov_b32 s{S_OUT}, s58
s_mov_b32 s{S_OUT+1}, s59
s_mov_b32 s{S_OUT+2}, 2621440
s_mov_b32 s{S_OUT+3}, 0x20000
s_mov_b32 s{S_DBG}, s60
s_mov_b32 s{S_DBG+1}, s61
s_mov_b32 s{S_DBG+2}, 256
s_mov_b32 s{S_DBG+3}, 0x20000
s_mov_b32 s{S_WS}, s62
s_mov_b32 s{S_WS+1}, s63
s_mov_b32 s{S_WS+2}, {WS_BYTES}
s_mov_b32 s{S_WS+3}, 0x20000
s_add_u32 s64, s62, {WS_KEY}
s_addc_u32 s65, s63, 0
s_load_dword s80, s[64:65], 0
s_cmp_lt_u32 s2, {NAUX}
s_cbranch_scc1 K2_AUX
""")
    gen_main(a)
    a("K2_AUX:")
    gen_aux(a)
    a("K2_END:")
    a("s_endpgm")
    return a.text()

def emit_idx(a, wait):
    a('s_waitcnt lgkmcnt(0)')
    a(f"s_mov_b32 s{S_KEY}, s80")
    a("s_and_b32 s81, s80, 0x7ff")
    a(f"s_sub_u32 s{S_IDX}, 2047, s81")

def gen_main(a):
    a(f"""
s_sub_u32 s38, s2, {NAUX}
s_and_b32 s39, s38, 7           ; xcd
s_lshr_b32 s40, s38, 3          ; j 0..19
s_and_b32 s41, s40, 3
s_lshl_b32 s39, s39, 2
s_add_u32 s{S_RBK}, s39, s41
s_lshr_b32 s{S_CB}, s40, 2
; ---- addresses ----
v_and_b32 v10, 31, v{V_LANE}
v_lshrrev_b32 v11, 3, v10
v_lshlrev_b32 v11, 2, v11
v_and_b32 v12, 3, v10
v_add_u32 v11, v11, v12          ; q'
v_bfe_u32 v12, v10, 2, 1
v_mul_u32_u24 v12, 10, v12
v_add_u32 v12, v12, v11
v_mov_b32 v13, 20
v_cmp_gt_u32 vcc, 10, v11
s_nop 1
v_cndmask_b32 v12, v13, v12, vcc ; r
v_mul_u32_u24 v12, 160, v12
v_lshrrev_b32 v13, 5, v{V_LANE}  ; hf
v_lshlrev_b32 v14, 5, v13
v_add_u32 v2, v12, v14
v_mov_b32 v3, v12
v_bfe_u32 v11, v10, 4, 1
v_mul_u32_u24 v11, 40960, v11
v_lshlrev_b32 v14, 8, v13
v_and_b32 v15, 15, v10
v_lshlrev_b32 v15, 4, v15
v_add3_u32 v4, v11, v14, v15
s_lshl_b32 s42, s{S_WAVE}, 2              ; head0 = 4w
s_mul_i32 s43, s42, 3360
s_lshl_b32 s44, s{S_RBK}, 2               ; tt0
s_lshl_b32 s44, s44, 5
s_add_u32 s44, s44, s42
s_mul_i32 s44, s44, 1280
s_add_u32 s44, s44, {WS_PQ}
s_and_b32 s45, s{S_WAVE}, 3               ; nu
s_lshr_b32 s46, s{S_WAVE}, 2              ; eta
s_lshl_b32 s47, s{S_CB}, 2
s_add_u32 s47, s47, s45
s_mul_i32 s47, s47, 40
s_mul_i32 s66, s46, 20
s_add_u32 s47, s47, s66
s_lshl_b32 s47, s47, 10
s_add_u32 s47, s47, {WS_WOP}
v_lshlrev_b32 v5, 4, v{V_LANE}
""")
    def load_pq(h):
        pb = PQB + 24*(h & 1)
        a(f"s_add_u32 s66, s44, {1280*h}")
        a(f"s_add_u32 s67, s66, {2*40960}")
        for tau in range(2):
            sb = "s66" if tau == 0 else "s67"
            for s in range(3):
                r = pb + 12*tau + 4*s
                if s == 2:
                    for j in range(4):
                        a(f"v_mov_b32 v{r+j}, 0")
                    a("s_mov_b32 exec_hi, 0")
                a(f"buffer_load_dwordx4 v[{r}:{r+3}], v4, s[{S_WS}:{S_WS+3}], {sb} offen offset:{512*s}")
                if s == 2:
                    a("s_mov_b32 exec_hi, -1")
    a(f"""
s_add_u32 s66, s43, {WS_KVACC}
v_lshlrev_b32 v9, 4, v{V_LANE}
s_mov_b32 m0, s43
""")
    for i in range(14):
        if i == 13:
            a("s_mov_b64 exec, 0xff")
        a(f"buffer_load_dwordx4 v9, s[{S_WS}:{S_WS+3}], s66 offen lds")
        if i < 13:
            a(f"s_add_u32 m0, m0, 1024")
            a(f"s_add_u32 s66, s66, 1024")
    a("s_mov_b64 exec, -1")
    load_pq(0)
    load_pq(1)
    a("s_barrier")
    def load_wo(k):
        a(f"s_add_u32 s67, s47, {4096*(k//4)}")
        a(f"buffer_load_dwordx4 v[{WOF_(k)}:{WOF_(k)+3}], v5, s[{S_WS}:{S_WS+3}], s67 offen offset:{1024*(k%4)}")
    for k in range(5):
        load_wo(k)
    a(f"""
s_mul_i32 s66, s{S_WAVE}, 10240
v_lshlrev_b32 v6, 4, v{V_LANE}
v_add_u32 v6, s66, v6
s_mov_b32 s68, 0x358637bd      ; 1e-6
v_add_u32 v2, s43, v2
v_add_u32 v3, s43, v3
""")
    ST2.stamp(a, 'issued', 1)
    a("s_waitcnt vmcnt(17)")
    for h in range(4):
        kb = KVA
        for s_ in range(3):
            vo = 2 if s_ < 2 else 3
            a(f"ds_read_b128 v[{kb+8*s_}:{kb+8*s_+3}], v{vo} offset:{3360*h + 64*s_}")
            a(f"ds_read_b128 v[{kb+8*s_+4}:{kb+8*s_+7}], v{vo} offset:{3360*h + 64*s_ + 16}")
        a("s_waitcnt lgkmcnt(0)")
        for i in range(12):
            a(f"v_cvt_pk_bf16_f32 v{KVP+12*h+i}, v{kb+2*i}, v{kb+2*i+1}")
    a("s_barrier")
    waits = [11, 11, 6, 8]
    for h in range(4):
        pb = PQB + 24*(h & 1)
        a(f"s_waitcnt vmcnt({waits[h]})")
        for tau in range(2):
            for s_ in range(3):
                c = f"v[{DAC+16*tau}:{DAC+16*tau+15}]" if s_ > 0 else "0"
                a(f"v_mfma_f32_32x32x16_bf16 v[{DAC+16*tau}:{DAC+16*tau+15}], v[{KVP+12*h+4*s_}:{KVP+12*h+4*s_+3}], v[{pb+12*tau+4*s_}:{pb+12*tau+4*s_+3}], {c}")
        if h < 2:
            load_pq(h + 2)
        elif h == 2:
            for k in range(5, 13): load_wo(k)
        else:
            for k in range(13, 20): load_wo(k)
        a("s_nop 7")
        a("s_nop 3")
        for tau in range(2):
            d = DAC + 16*tau
            a(f"v_cvt_pk_bf16_f32 v10, v{d+10}, v{d+10}")
            a(f"v_and_b32 v10, 0xffff0000, v10")
            a(f"v_add_f32 v10, s68, v10")
            a(f"v_cvt_pk_bf16_f32 v10, v10, v10")
            a(f"v_and_b32 v10, 0xffff0000, v10")
            a(f"v_rcp_f32 v10, v10")
            for i in range(5):
                a(f"v_cvt_pk_bf16_f32 v{OPK+i}, v{d+2*i}, v{d+2*i+1}")
            a(f"v_mov_b32 v11, v10")
            for i in range(5):
                a(f"v_lshlrev_b32 v{d+2*i}, 16, v{OPK+i}")
                a(f"v_and_b32 v{d+2*i+1}, 0xffff0000, v{OPK+i}")
            for i in range(5):
                a(f"v_pk_mul_f32 v[{d+2*i}:{d+2*i+1}], v[{d+2*i}:{d+2*i+1}], v[10:11]")
            for i in range(5):
                a(f"v_cvt_pk_bf16_f32 v{OPK+5+i}, v{d+2*i}, v{d+2*i+1}")
            for i in range(5):
                rho = 5*h + i
                a(f"ds_write_b32 v6, v{OPK+5+i} offset:{((rho//4)*2+tau)*1024 + 4*(rho%4)}")
    ST2.stamp(a, 'ophase', 2)
    XR, ST = 26, 34
    a(f"""
s_lshl_b32 s66, s{S_RBK}, 6
s_lshl_b32 s67, s46, 5
s_add_u32 s66, s66, s67
v_and_b32 v10, 31, v{V_LANE}
v_add_u32 v10, s66, v10                ; token
v_lshlrev_b32 v11, 3, v10
s_mov_b32 s67, {WS_STATS}
buffer_load_dwordx2 v[{ST}:{ST+1}], v11, s[{S_WS}:{S_WS+3}], s67 offen
s_movk_i32 s67, 1280
v_mul_lo_u32 v7, v10, s67
s_lshl_b32 s67, s{S_CB}, 8
s_lshl_b32 s69, s45, 6
s_add_u32 s67, s67, s69
v_lshrrev_b32 v11, 5, v{V_LANE}
v_lshlrev_b32 v11, 5, v11
v_add3_u32 v7, v7, v11, s67
buffer_load_dwordx4 v[{XR}:{XR+3}], v7, s[{S_X}:{S_X+3}], 0 offen
buffer_load_dwordx4 v[{XR+4}:{XR+7}], v7, s[{S_X}:{S_X+3}], 0 offen offset:16
v_mov_b32 v8, v10
s_waitcnt vmcnt(10) lgkmcnt(0)
s_barrier
s_mul_i32 s66, s46, 40960
v_lshlrev_b32 v6, 4, v{V_LANE}
v_add_u32 v6, s66, v6
""")
    BF = 36
    def rd(k, buf):
        a(f"ds_read_b128 v[{BF+8*buf}:{BF+8*buf+3}], v6 offset:{2048*k}")
        a(f"ds_read_b128 v[{BF+8*buf+4}:{BF+8*buf+7}], v6 offset:{2048*k+1024}")
    rd(0, 0)
    for k in range(20):
        if k == 13:
            a("s_waitcnt vmcnt(3)")
        if k < 19:
            rd(k+1, (k+1)&1)
            a("s_waitcnt lgkmcnt(2)")
        else:
            a("s_waitcnt lgkmcnt(0)")
        b = BF + 8*(k&1)
        for tau in range(2):
            c = f"v[{DAC+16*tau}:{DAC+16*tau+15}]" if k > 0 else "0"
            a(f"v_mfma_f32_32x32x16_bf16 v[{DAC+16*tau}:{DAC+16*tau+15}], v[{WOF_(k)}:{WOF_(k)+3}], v[{b+4*tau}:{b+4*tau+3}], {c}")
    ST2.stamp(a, 'gemm', 3)
    a(f"""
s_nop 7
s_nop 3
s_lshl_b32 s66, s{S_WAVE}, 12
s_add_u32 s66, s66, {L_RED}
v_lshlrev_b32 v6, 4, v{V_LANE}
v_add_u32 v6, s66, v6
s_xor_b32 s67, s{S_WAVE}, 4
s_lshl_b32 s67, s67, 12
s_add_u32 s67, s67, {L_RED}
v_lshlrev_b32 v9, 4, v{V_LANE}
v_add_u32 v9, s67, v9
s_cmp_eq_u32 s46, 0
s_cbranch_scc0 K2_ETA1
""")
    for q in range(4):
        a(f"ds_write_b128 v6, v[{DAC+16+4*q}:{DAC+16+4*q+3}] offset:{1024*q}")
    a("s_branch K2_ETA_J")
    a("K2_ETA1:")
    for q in range(4):
        a(f"ds_write_b128 v6, v[{DAC+4*q}:{DAC+4*q+3}] offset:{1024*q}")
    for q in range(16):
        a(f"v_mov_b32 v{DAC+q}, v{DAC+16+q}")
    a("K2_ETA_J:")
    a("s_waitcnt lgkmcnt(0)")
    a("s_barrier")
    RD = 52
    for q in range(4):
        a(f"ds_read_b128 v[{RD+4*q}:{RD+4*q+3}], v9 offset:{1024*q}")
    emit_idx(a, 's_waitcnt lgkmcnt(0)')
    for q in range(16):
        a(f"v_add_f32 v{DAC+q}, v{DAC+q}, v{RD+q}")
    Y = 120
    for q in range(16):
        a(f"v_mov_b32 v{Y+q}, 0")
    a(f"""
s_lshl_b32 s66, s{S_RBK}, 6
s_lshl_b32 s67, s46, 5
s_add_u32 s66, s66, s67
s_sub_u32 s67, s{S_IDX}, s66
s_cmp_ge_u32 s67, 32
s_cbranch_scc1 K2_NOOWN
v_mov_b32 v10, 0
K2_POLL:
buffer_load_dword v11, v10, s[{S_DBG}:{S_DBG+3}], 0 offen sc0 sc1
s_waitcnt vmcnt(0)
s_nop 0
v_readfirstlane_b32 s69, v11
s_nop 3
s_cmp_ge_u32 s69, {NAUX}
s_cbranch_scc1 K2_POLLED
s_sleep 2
s_branch K2_POLL
K2_POLLED:
v_and_b32 v10, 31, v{V_LANE}
v_lshlrev_b32 v10, 2, v10
v_lshrrev_b32 v11, 5, v{V_LANE}
v_mul_u32_u24 v11, 61440, v11
v_add_u32 v10, v10, v11
s_lshl_b32 s69, s{S_CB}, 9
s_lshl_b32 s70, s45, 7
s_add_u32 s69, s69, s70
s_add_u32 s69, s69, {WS_YPART}
""")
    for p in range(24):
        a(f"s_add_u32 s70, s69, {2560*p}")
        a(f"buffer_load_dword v{80+p}, v10, s[{S_WS}:{S_WS+3}], s70 offen sc0 sc1")
    a("s_waitcnt vmcnt(0)")
    for p in range(1, 24):
        a(f"v_add_f32 v80, v80, v{80+p}")
    a(f"""
v_mov_b32 v81, v80
s_nop 1
v_permlane32_swap_b32 v80, v81
s_nop 1
v_add_f32 v80, v80, v81
v_cvt_pk_bf16_f32 v80, v80, v80
v_and_b32 v80, 0xffff0000, v80
; r_sel
s_and_b32 s69, s{S_KEY}, 0xffff0000
s_xor_b32 s70, s69, 0x80000000
s_not_b32 s71, s69
s_and_b32 s71, s71, 0xffff0000
s_cmp_lt_i32 s69, 0
s_cselect_b32 s69, s70, s71         ; r bits
v_mov_b32 v81, s69
v_mul_f32 v81, 0xbfb8aa3b, v81
v_exp_f32 v81, v81
s_nop 0
v_add_f32 v81, 1.0, v81
v_rcp_f32 v81, v81
s_nop 0
v_cvt_pk_bf16_f32 v81, v81, v81
v_and_b32 v81, 0xffff0000, v81
v_mul_f32 v80, v80, v81
v_cvt_pk_bf16_f32 v80, v80, v80
v_and_b32 v80, 0xffff0000, v80
s_lshl_b32 s69, s{S_WAVE}, 8
v_and_b32 v10, 31, v{V_LANE}
v_lshlrev_b32 v10, 2, v10
v_add_u32 v10, s69, v10
ds_write_b32 v10, v80
v_lshrrev_b32 v11, 5, v{V_LANE}
v_lshlrev_b32 v11, 6, v11
v_add_u32 v11, s69, v11
s_waitcnt lgkmcnt(0)
ds_read_b128 v[{Y}:{Y+3}], v11
ds_read_b128 v[{Y+4}:{Y+7}], v11 offset:16
ds_read_b128 v[{Y+8}:{Y+11}], v11 offset:32
ds_read_b128 v[{Y+12}:{Y+15}], v11 offset:48
s_waitcnt lgkmcnt(0)
v_cmp_eq_u32 vcc, s{S_IDX}, v8
s_nop 1
""")
    for q in range(16):
        a(f"v_cndmask_b32 v{Y+q}, 0, v{Y+q}, vcc")
    a("K2_NOOWN:")
    ST2.stamp(a, 'moe', 4)
    a("s_waitcnt vmcnt(0)")
    T = 140
    a(f"v_sub_f32 v{T+20}, 0, v{ST}")
    for q in range(8):
        xr = XR + q
        x0, x1 = T, T+1
        a(f"v_lshlrev_b32 v{x0}, 16, v{xr}")
        a(f"v_and_b32 v{x1}, 0xffff0000, v{xr}")
        a(f"v_cvt_pk_bf16_f32 v{T+2}, v{DAC+2*q}, v{DAC+2*q+1}")
        a(f"v_lshlrev_b32 v{T+3}, 16, v{T+2}")
        a(f"v_and_b32 v{T+4}, 0xffff0000, v{T+2}")
        a(f"v_add_f32 v{T+3}, v{x0}, v{T+3}")
        a(f"v_add_f32 v{T+4}, v{x1}, v{T+4}")
        a(f"v_cvt_pk_bf16_f32 v{T+2}, v{T+3}, v{T+4}")
        a(f"v_lshlrev_b32 v{T+3}, 16, v{T+2}")
        a(f"v_and_b32 v{T+4}, 0xffff0000, v{T+2}")
        a(f"v_add_f32 v{x0}, v{x0}, v{T+20}")
        a(f"v_add_f32 v{x1}, v{x1}, v{T+20}")
        a(f"v_cvt_pk_bf16_f32 v{T+5}, v{x0}, v{x1}")
        a(f"v_lshlrev_b32 v{x0}, 16, v{T+5}")
        a(f"v_and_b32 v{x1}, 0xffff0000, v{T+5}")
        a(f"v_mul_f32 v{x0}, v{x0}, v{ST+1}")
        a(f"v_mul_f32 v{x1}, v{x1}, v{ST+1}")
        a(f"v_cvt_pk_bf16_f32 v{T+5}, v{x0}, v{x1}")
        a(f"v_lshlrev_b32 v{x0}, 16, v{T+5}")
        a(f"v_and_b32 v{x1}, 0xffff0000, v{T+5}")
        a(f"v_add_f32 v{x0}, v{x0}, v{Y+2*q}")
        a(f"v_add_f32 v{x1}, v{x1}, v{Y+2*q+1}")
        a(f"v_cvt_pk_bf16_f32 v{T+5}, v{x0}, v{x1}")
        a(f"v_lshlrev_b32 v{x0}, 16, v{T+5}")
        a(f"v_and_b32 v{x1}, 0xffff0000, v{T+5}")
        a(f"v_add_f32 v{x0}, v{x0}, v{T+3}")
        a(f"v_add_f32 v{x1}, v{x1}, v{T+4}")
        a(f"v_cvt_pk_bf16_f32 v{T+8+q}, v{x0}, v{x1}")
    a(f"buffer_store_dwordx4 v[{T+8}:{T+11}], v7, s[{S_OUT}:{S_OUT+3}], 0 offen")
    a(f"buffer_store_dwordx4 v[{T+12}:{T+15}], v7, s[{S_OUT}:{S_OUT+3}], 0 offen offset:16")
    ST2.stamp(a, 'end', 5)
    ST2.flush(a, S_WS, WS_TS2, S_WAVE, "K2_TSF_M")
    a("s_branch K2_END")

def gen_aux(a):
    GW, UW, DW = 16, 36, 56
    L_XN, L_P, L_H, L_Y = 0, 4096, 8192, 12288
    a(f"""
v_lshrrev_b32 v10, 2, v0
s_movk_i32 s38, 3072
v_mul_lo_u32 v11, v10, s38
v_and_b32 v12, 3, v0
v_lshlrev_b32 v12, 4, v12
s_lshl_b32 s39, s2, 6
v_add3_u32 v2, v11, v12, s39
""")
    for i in range(5):
        a(f"s_mov_b32 s40, {i*128*3072}")
        a(f"buffer_load_dwordx4 v[{GW+4*i}:{GW+4*i+3}], v2, s[{S_G}:{S_G+3}], s40 offen")
        a(f"buffer_load_dwordx4 v[{UW+4*i}:{UW+4*i+3}], v2, s[{S_U}:{S_U+3}], s40 offen")
    a(f"""
; down: t<320: chunk = t%80 ; rgd = t/80 ; rows 32a + 8 rgd + i
v_mul_u32_u24 v11, 205, v0
v_lshrrev_b32 v11, 14, v11          ; t/80 (205/16384=0.012512) 
v_mul_u32_u24 v12, 80, v11
v_sub_u32 v12, v0, v12              ; chunk
v_lshlrev_b32 v13, 3, v11
s_lshl_b32 s39, s2, 5
v_add_u32 v13, s39, v13             ; row0
s_movk_i32 s38, 1280
v_mul_lo_u32 v13, v13, s38
v_lshlrev_b32 v14, 4, v12
v_add_u32 v3, v13, v14
v_mov_b32 v4, v11                   ; rgd
v_mov_b32 v5, v12                   ; chunk
s_cmp_ge_u32 s{S_WAVE}, 5
s_cbranch_scc1 K2A_NODL
""")
    for i in range(8):
        a(f"buffer_load_dwordx4 v[{DW+4*i}:{DW+4*i+3}], v3, s[{S_D}:{S_D+3}], 0 offen offset:{1280*(i%3)}" if False else
          f"s_mov_b32 s40, {1280*i}\nbuffer_load_dwordx4 v[{DW+4*i}:{DW+4*i+3}], v3, s[{S_D}:{S_D+3}], s40 offen")
    a("K2A_NODL:")
    ST2.stamp(a, 'issued', 1)
    emit_idx(a, 's_waitcnt vmcnt(18)')
    ST2.stamp(a, 'idx', 2)
    a(f"""
s_cmp_ge_u32 s{S_WAVE}, 2
s_cbranch_scc1 K2A_NOX
s_mul_i32 s38, s{S_IDX}, 1280
v_lshlrev_b32 v10, 4, v0
s_lshl_b32 s39, s{S_IDX}, 3
s_add_u32 s39, s39, {WS_STATS}
v_mov_b32 v11, 0
buffer_load_dwordx4 v[96:99], v10, s[{S_X}:{S_X+3}], s38 offen
buffer_load_dwordx2 v[100:101], v11, s[{S_WS}:{S_WS+3}], s39 offen
s_waitcnt vmcnt(0)
v_sub_f32 v102, 0, v100
""")
    for q in range(4):
        a(f"v_lshlrev_b32 v{104+2*q}, 16, v{96+q}")
        a(f"v_and_b32 v{105+2*q}, 0xffff0000, v{96+q}")
    for q in range(8):
        a(f"v_add_f32 v{104+q}, v{104+q}, v102")
    for q in range(4):
        a(f"v_cvt_pk_bf16_f32 v{96+q}, v{104+2*q}, v{105+2*q}")
    for q in range(4):
        a(f"v_lshlrev_b32 v{104+2*q}, 16, v{96+q}")
        a(f"v_and_b32 v{105+2*q}, 0xffff0000, v{96+q}")
    for q in range(8):
        a(f"v_mul_f32 v{104+q}, v{104+q}, v101")
    for q in range(4):
        a(f"v_cvt_pk_bf16_f32 v{96+q}, v{104+2*q}, v{105+2*q}")
    for q in range(4):
        a(f"v_lshlrev_b32 v{104+2*q}, 16, v{96+q}")
        a(f"v_and_b32 v{105+2*q}, 0xffff0000, v{96+q}")
    a(f"""
v_lshlrev_b32 v10, 5, v0
v_cmp_gt_u32 vcc, 80, v0
s_and_saveexec_b64 s[64:65], vcc
ds_write_b128 v10, v[104:107] offset:{L_XN}
ds_write_b128 v10, v[108:111] offset:{L_XN+16}
s_mov_b64 exec, s[64:65]
K2A_NOX:
s_waitcnt vmcnt(0) lgkmcnt(0)
s_barrier
""")
    ST2.stamp(a, 'xn', 3)
    a(f"""
v_lshrrev_b32 v10, 2, v0
v_lshlrev_b32 v10, 2, v10          ; rg*4
""")
    for i in range(5):
        a(f"ds_read_b32 v{96+i}, v10 offset:{L_XN + 512*i}")
    AG, AU = 104, 112
    for q in range(16):
        a(f"v_mov_b32 v{AG+q}, 0")
    a("s_waitcnt lgkmcnt(0)")
    for i in range(5):
        for (W, A) in ((GW, AG), (UW, AU)):
            for q in range(4):
                a(f"v_lshlrev_b32 v120, 16, v{W+4*i+q}")
                a(f"v_and_b32 v121, 0xffff0000, v{W+4*i+q}")
                a(f"v_fmac_f32 v{A+2*q}, v120, v{96+i}")
                a(f"v_fmac_f32 v{A+2*q+1}, v121, v{96+i}")
    for q in range(16):
        a("s_nop 1")
        a(f"v_add_f32_dpp v{AG+q}, v{AG+q}, v{AG+q} row_ror:4 row_mask:0xf bank_mask:0xf")
    for q in range(16):
        a("s_nop 1")
        a(f"v_add_f32_dpp v{AG+q}, v{AG+q}, v{AG+q} row_ror:8 row_mask:0xf bank_mask:0xf")
    for sw in ("v_permlane16_swap_b32", "v_permlane32_swap_b32"):
        for q in range(16):
            a(f"v_mov_b32 v{124+q}, v{AG+q}")
        a("s_nop 1")
        for q in range(16):
            a(f"{sw} v{AG+q}, v{124+q}")
        a("s_nop 1")
        for q in range(16):
            a(f"v_add_f32 v{AG+q}, v{AG+q}, v{124+q}")
    a(f"""
s_lshl_b32 s38, s{S_WAVE}, 8
v_lshlrev_b32 v10, 5, v{V_LANE}
v_add_u32 v10, s38, v10
s_mov_b64 exec, 0xf
ds_write_b128 v10, v[{AG}:{AG+3}] offset:{L_P}
ds_write_b128 v10, v[{AG+4}:{AG+7}] offset:{L_P+16}
ds_write_b128 v10, v[{AU}:{AU+3}] offset:{L_P+128}
ds_write_b128 v10, v[{AU+4}:{AU+7}] offset:{L_P+144}
s_mov_b64 exec, -1
s_waitcnt lgkmcnt(0)
s_barrier
s_cmp_lg_u32 s{S_WAVE}, 0
s_cbranch_scc1 K2A_NOH
v_and_b32 v10, 31, v{V_LANE}
v_lshlrev_b32 v10, 2, v10
""")
    for w in range(8):
        a(f"ds_read_b32 v{96+w}, v10 offset:{L_P + 256*w}")
        a(f"ds_read_b32 v{104+w}, v10 offset:{L_P + 256*w + 128}")
    a("s_waitcnt lgkmcnt(0)")
    for w in range(1, 8):
        a(f"v_add_f32 v96, v96, v{96+w}")
        a(f"v_add_f32 v104, v104, v{104+w}")
    a(f"""
v_cvt_pk_bf16_f32 v97, v96, v104
v_lshlrev_b32 v96, 16, v97            ; g_b
v_and_b32 v104, 0xffff0000, v97       ; u_b
v_mul_f32 v98, 0xbfb8aa3b, v96
v_exp_f32 v98, v98
s_nop 0
v_add_f32 v98, 1.0, v98
v_rcp_f32 v98, v98
s_nop 0
v_mul_f32 v98, v96, v98               ; silu
v_cvt_pk_bf16_f32 v98, v98, v98
v_and_b32 v98, 0xffff0000, v98
v_mul_f32 v98, v98, v104
v_cvt_pk_bf16_f32 v98, v98, v98
v_and_b32 v98, 0xffff0000, v98        ; h
s_mov_b32 exec_hi, 0
ds_write_b32 v10, v98 offset:{L_H}
s_mov_b64 exec, -1
K2A_NOH:
s_waitcnt lgkmcnt(0)
s_barrier
""")
    ST2.stamp(a, 'h', 4)
    a(f"""
s_cmp_ge_u32 s{S_WAVE}, 5
s_cbranch_scc1 K2A_NOD
v_lshlrev_b32 v10, 5, v4             ; rgd*8*4
ds_read_b128 v[96:99], v10 offset:{L_H}
ds_read_b128 v[100:103], v10 offset:{L_H+16}
""")
    for q in range(8):
        a(f"v_mov_b32 v{104+q}, 0")
    a("s_waitcnt lgkmcnt(0)")
    for i in range(8):
        for q in range(4):
            a(f"v_lshlrev_b32 v120, 16, v{DW+4*i+q}")
            a(f"v_and_b32 v121, 0xffff0000, v{DW+4*i+q}")
            a(f"v_fmac_f32 v{104+2*q}, v120, v{96+i}")
            a(f"v_fmac_f32 v{105+2*q}, v121, v{96+i}")
    a(f"""
v_mul_u32_u24 v10, 2560, v4
v_lshlrev_b32 v11, 5, v5
v_add_u32 v10, v10, v11
ds_write_b128 v10, v[104:107] offset:{L_Y}
ds_write_b128 v10, v[108:111] offset:{L_Y+16}
K2A_NOD:
s_waitcnt lgkmcnt(0)
s_barrier
s_cmp_ge_u32 s{S_WAVE}, 3
s_cbranch_scc1 K2A_NOS
v_lshlrev_b32 v10, 4, v0
ds_read_b128 v[96:99], v10 offset:{L_Y}
ds_read_b128 v[100:103], v10 offset:{L_Y+2560}
ds_read_b128 v[104:107], v10 offset:{L_Y+5120}
ds_read_b128 v[108:111], v10 offset:{L_Y+7680}
s_waitcnt lgkmcnt(0)
""")
    for q in range(4):
        a(f"v_add_f32 v{96+q}, v{96+q}, v{100+q}")
        a(f"v_add_f32 v{104+q}, v{104+q}, v{108+q}")
        a(f"v_add_f32 v{96+q}, v{96+q}, v{104+q}")
    a(f"""
s_mul_i32 s38, s2, 2560
s_add_u32 s38, s38, {WS_YPART}
v_cmp_gt_u32 vcc, 160, v0
s_and_saveexec_b64 s[64:65], vcc
buffer_store_dwordx4 v[96:99], v10, s[{S_WS}:{S_WS+3}], s38 offen sc0 sc1
s_mov_b64 exec, s[64:65]
s_waitcnt vmcnt(0)
K2A_NOS:
s_barrier
s_cmp_lg_u32 s{S_WAVE}, 0
s_cbranch_scc1 K2_END
v_mov_b32 v10, 0
v_mov_b32 v11, 1
s_mov_b64 exec, 1
buffer_atomic_add v11, v10, s[{S_DBG}:{S_DBG+3}], 0 offen
s_mov_b64 exec, -1
""")
    ST2.stamp(a, 'end', 5)
    ST2.flush(a, S_WS, WS_TS2, S_WAVE, "K2_TSF_A")
    a("s_branch K2_END")
```

```python
from common import *
import os
STF = os.environ.get('STF', '')
K0_GRID = 256
K0_BLOCK = 320
K0_LDS = 16384
K0_VGPR = 64
S_X, S_W, S_WO, S_WR, S_WS = 4, 8, 12, 16, 20
S_WAVE = 32
ST0 = Stamper(80, 2)
def gen_k0():
    a = Asm()
    a.lines.append(kstart("k0_kernel"))
    ST0.stamp(a, 'entry', 0)
    a(f"""
s_cmp_ge_u32 s2, {K0_GRID}
s_cbranch_scc1 K0_END2
s_load_dwordx4 s[48:51], s[0:1], 0
s_load_dwordx2 s[52:53], s[0:1], 24
s_load_dwordx2 s[54:55], s[0:1], 40
s_load_dwordx2 s[56:57], s[0:1], 88
s_load_dwordx4 s[24:27], s[0:1], 48
s_load_dwordx2 s[28:29], s[0:1], 64
v_and_b32 v1, 63, v0
v_lshrrev_b32 v10, 6, v0
s_nop 0
v_readfirstlane_b32 s{S_WAVE}, v10
s_waitcnt lgkmcnt(0)
s_mov_b32 s{S_X}, s48
s_mov_b32 s{S_X+1}, s49
s_mov_b32 s{S_X+2}, 2621440
s_mov_b32 s{S_X+3}, 0x20000
s_mov_b32 s{S_W}, s50
s_mov_b32 s{S_W+1}, s51
s_mov_b32 s{S_W+2}, 2457600
s_mov_b32 s{S_W+3}, 0x20000
s_mov_b32 s{S_WO}, s52
s_mov_b32 s{S_WO+1}, s53
s_mov_b32 s{S_WO+2}, 819200
s_mov_b32 s{S_WO+3}, 0x20000
s_mov_b32 s{S_WR}, s54
s_mov_b32 s{S_WR+1}, s55
s_mov_b32 s{S_WR+2}, 1280
s_mov_b32 s{S_WR+3}, 0x20000
s_mov_b32 s{S_WS}, s56
s_mov_b32 s{S_WS+1}, s57
s_mov_b32 s{S_WS+2}, {WS_BYTES}
s_mov_b32 s{S_WS+3}, 0x20000
s_and_b32 s34, s2, 7                  ; copy c
s_lshr_b32 s35, s2, 3                  ; j 0..31
s_cmp_lt_u32 s{S_WAVE}, 2
s_cbranch_scc1 K0_LN
s_cmp_eq_u32 s{S_WAVE}, 4
s_cbranch_scc1 K0_MISC
s_mov_b32 s38, s2
s_mov_b32 s39, 0
s_cmp_eq_u32 s{S_WAVE}, 2
s_cbranch_scc1 K0_WB
s_cmp_ge_u32 s2, 64
s_cbranch_scc1 K0_END
s_add_u32 s38, s2, 256
s_movk_i32 s39, 8192
K0_WB:
; block id s38 -> pair = id/20, s = id%20 ; LDS base s39
s_mul_i32 s40, s38, 3277
s_lshr_b32 s40, s40, 16          ; pair
s_mul_i32 s41, s40, 20
s_sub_u32 s41, s38, s41          ; s
s_mul_i32 s42, s41, {32*3840}
s_mul_i32 s43, s40, 80
s_add_u32 s42, s42, s43
""")
    for i in range(8):
        a(f"""
v_add_u32 v10, {64*i}, v1            ; sigma
v_mul_u32_u24 v11, 4370, v10
v_lshrrev_b32 v11, 16, v11
v_mul_u32_u24 v12, 15, v11
v_sub_u32 v12, v10, v12              ; cir
v_mul_u32_u24 v13, 13, v12
v_lshrrev_b32 v13, 6, v13
v_mul_u32_u24 v14, 5, v13
v_sub_u32 v14, v12, v14              ; c5
v_mul_u32_u24 v11, 3840, v11
v_mul_u32_u24 v13, 1280, v13
v_lshlrev_b32 v14, 4, v14
v_add3_u32 v11, v11, v13, v14
s_add_u32 m0, s39, {1024*i}
""")
        if i == 7:
            a("s_mov_b32 exec_hi, 0")
        a(f"buffer_load_dwordx4 v11, s[{S_W}:{S_W+3}], s42 offen lds")
    a(f"""
s_mov_b64 exec, -1
v_lshrrev_b32 v10, 4, v1
v_lshlrev_b32 v10, 3, v10
v_bfe_u32 v11, v1, 2, 2
v_add_u32 v10, v10, v11
v_mul_u32_u24 v10, 240, v10
v_add_u32 v10, s39, v10
v_and_b32 v11, 3, v1                 ; c
v_mul_u32_u24 v12, 40, v11
v_add_u32 v12, v12, v10              ; tiles 0-4: 40c (+8t)
v_lshrrev_b32 v13, 1, v11            ; u
v_mul_u32_u24 v13, 40, v13
v_and_b32 v14, 1, v11                ; g'
v_lshlrev_b32 v14, 3, v14
v_add3_u32 v13, v13, v14, v10
v_add_u32 v13, 160, v13              ; tiles 5,6: 160+40u+8g' (+16t')
v_lshrrev_b32 v14, 1, v11
v_mul_u32_u24 v14, 40, v14
v_add_u32 v14, v14, v10
v_add_u32 v14, 192, v14
s_mul_i32 s42, s38, 7680
s_add_u32 s42, s42, {WS_WPF}
v_lshlrev_b32 v15, 4, v1
v_lshrrev_b32 v16, 4, v1
v_lshlrev_b32 v16, 3, v16
v_bfe_u32 v17, v1, 3, 1
v_lshlrev_b32 v17, 2, v17
v_and_b32 v18, 3, v1
v_add3_u32 v16, v16, v17, v18
v_lshlrev_b32 v16, 4, v16
s_waitcnt vmcnt(0)
""")
    for t in range(8):
        r = 20 + 4*t
        if t < 5: va, off = 12, 8*t
        elif t < 7: va, off = 13, 16*(t-5)
        else: va, off = 14, 0
        a(f"ds_read_b64_tr_b16 v[{r}:{r+1}], v{va} offset:{off}")
        a(f"ds_read_b64_tr_b16 v[{r+2}:{r+3}], v{va} offset:{off + 960}")
    a("s_waitcnt lgkmcnt(0)")
    for t in range(7):
        a(f"buffer_store_dwordx4 v[{20+4*t}:{23+4*t}], v15, s[{S_WS}:{S_WS+3}], s42 offen offset:{1024*t}{STF}" if t < 4 else
          f"s_add_u32 s43, s42, {1024*t}\nbuffer_store_dwordx4 v[{20+4*t}:{23+4*t}], v15, s[{S_WS}:{S_WS+3}], s43 offen{STF}")
    a(f"""
s_add_u32 s43, s42, 7168
s_mov_b32 exec_lo, 0x0f0f0f0f
s_mov_b32 exec_hi, 0x0f0f0f0f
buffer_store_dwordx4 v[48:51], v16, s[{S_WS}:{S_WS+3}], s43 offen
s_branch K0_END
""")
    a(f"""
K0_MISC:
s_cmp_ge_u32 s2, 117
s_cbranch_scc1 K0_WO
s_lshl_b32 s38, s2, 6
v_add_u32 v10, s38, v1
v_lshlrev_b32 v11, 4, v10
v_add_u32 v12, {WS_GU - 107520}, v11
v_cmp_gt_u32 vcc, 6720, v10
s_nop 1
v_cndmask_b32 v11, v12, v11, vcc
v_mov_b32 v4, 0
v_mov_b32 v5, 0
v_mov_b32 v6, 0
v_mov_b32 v7, 0
buffer_store_dwordx4 v[4:7], v11, s[{S_WS}:{S_WS+3}], 0 offen
K0_WO:
s_cmp_ge_u32 s2, 200
s_cbranch_scc1 K0_END
v_and_b32 v10, 31, v1
v_lshrrev_b32 v11, 2, v10
v_and_b32 v11, 1, v11
v_lshlrev_b32 v11, 4, v11
v_lshrrev_b32 v12, 3, v10
v_lshlrev_b32 v12, 2, v12
v_and_b32 v13, 3, v10
v_add3_u32 v11, v11, v12, v13
v_lshlrev_b32 v11, 1, v11
v_lshrrev_b32 v12, 5, v1
v_mul_u32_u24 v12, 12800, v12
v_add_u32 v11, v11, v12
v_lshlrev_b32 v14, 4, v1
s_lshl_b32 s38, s2, 2
""")
    for i in range(4):
        a(f"""
s_add_u32 s47, s38, {i}
s_mul_i32 s39, s47, 1639
s_lshr_b32 s39, s39, 16
s_mul_i32 s40, s39, 40
s_sub_u32 s40, s47, s40
s_mul_i32 s41, s40, 205
s_lshr_b32 s41, s41, 10
s_mul_i32 s42, s41, 5
s_sub_u32 s42, s40, s42
s_mul_i32 s43, s41, 80
s_lshl_b32 s64, s42, 3
s_lshl_b32 s65, s39, 6
""")
        for j in range(8):
            a(f"""
s_add_u32 s66, s64, {j}
s_mul_i32 s67, s66, 205
s_lshr_b32 s67, s67, 11
s_mul_i32 s67, s67, 10
s_add_u32 s66, s66, s67
s_add_u32 s66, s66, s43
s_mul_i32 s66, s66, 1280
s_add_u32 s66, s66, s65
buffer_load_ushort v{16+8*i+j}, v11, s[{S_WO}:{S_WO+3}], s66 offen
""")
    a("s_waitcnt vmcnt(0)")
    for i in range(4):
        for q in range(4):
            a(f"v_lshl_or_b32 v{48+4*i+q}, v{17+8*i+2*q}, 16, v{16+8*i+2*q}")
        a(f"s_add_u32 s47, s38, {i}")
        a(f"s_lshl_b32 s47, s47, 10")
        a(f"s_add_u32 s47, s47, {WS_WOP}")
        a(f"buffer_store_dwordx4 v[{48+4*i}:{48+4*i+3}], v14, s[{S_WS}:{S_WS+3}], s47 offen")
    a("s_branch K0_END")
    a(f"""
K0_TOUCH:
s_cmp_ge_u32 s35, 24
s_cbranch_scc1 K0_END
s_mov_b32 s68, s24
s_mov_b32 s69, s25
s_mov_b32 s70, 1966080
s_mov_b32 s71, 0x20000
s_mov_b32 s72, s26
s_mov_b32 s73, s27
s_mov_b32 s74, 1966080
s_mov_b32 s75, 0x20000
s_mov_b32 s76, s28
s_mov_b32 s77, s29
s_mov_b32 s78, 1966080
s_mov_b32 s79, 0x20000
s_lshr_b32 s42, s35, 2
s_lshl_b32 s42, s42, 3
s_add_u32 s42, s42, s34                ; a
s_and_b32 s43, s35, 3
s_mul_i32 s46, s43, 160
v_lshrrev_b32 v10, 2, v1
v_add_u32 v10, s46, v10
s_movk_i32 s47, 3072
v_mul_lo_u32 v10, v10, s47
v_and_b32 v11, 3, v1
v_lshlrev_b32 v11, 4, v11
s_lshl_b32 s47, s42, 6
v_add3_u32 v10, v10, v11, s47
v_lshlrev_b32 v12, 4, v1
""")
    for i in range(10):
        a(f"s_mov_b32 s47, {16*3072*i}")
        a(f"buffer_load_dwordx4 v[16:19], v10, s[68:71], s47 offen")
        a(f"buffer_load_dwordx4 v[20:23], v10, s[72:75], s47 offen")
    a(f"""
s_lshl_b32 s46, s42, 5
s_lshl_b32 s47, s43, 3
s_add_u32 s46, s46, s47
s_mul_i32 s46, s46, 1280
""")
    for i in range(10):
        a(f"s_add_u32 s47, s46, {1024*i}")
        a(f"buffer_load_dwordx4 v[24:27], v12, s[76:79], s47 offen")
    a("s_branch K0_END")
    a(f"""
K0_LN:
s_lshl_b32 s38, s2, 3
s_lshl_b32 s39, s{S_WAVE}, 2
s_add_u32 s38, s38, s39               ; t0
v_lshrrev_b32 v10, 4, v1
v_add_u32 v10, s38, v10               ; token
s_movk_i32 s39, 1280
v_mul_lo_u32 v11, v10, s39
v_and_b32 v12, 15, v1                 ; sub
v_lshlrev_b32 v13, 4, v12
v_add_u32 v11, v11, v13
""")
    X, WR = 16, 36
    for i in range(5):
        a(f"buffer_load_dwordx4 v[{X+4*i}:{X+4*i+3}], v11, s[{S_X}:{S_X+3}], 0 offen offset:{256*i}")
    for i in range(5):
        a(f"buffer_load_dwordx4 v[{WR+4*i}:{WR+4*i+3}], v13, s[{S_WR}:{S_WR+3}], 0 offen offset:{256*i}")
    a(f"""
s_mov_b32 s60, 0x3f803f80
s_mov_b32 s61, 0x00003f80
s_mov_b32 s62, 0x3f800000
v_mov_b32 v2, 0
v_mov_b32 v3, 0
s_waitcnt vmcnt(5)
""")
    for i in range(20):
        a(f"v_dot2_f32_bf16 v2, v{X+i}, s60, v2")
        a(f"v_dot2_f32_bf16 v3, v{X+i}, v{X+i}, v3")
    a("s_nop 3")
    for rot in (1, 2, 4, 8):
        a(f"v_add_f32_dpp v2, v2, v2 row_ror:{rot} row_mask:0xf bank_mask:0xf")
        a(f"v_add_f32_dpp v3, v3, v3 row_ror:{rot} row_mask:0xf bank_mask:0xf")
        a("s_nop 1")
    a(f"""
v_mul_f32 v2, 0x3acccccd, v2
v_mul_f32 v3, 0x3acccccd, v3
v_fma_f32 v3, -v2, v2, v3
v_max_f32 v3, 0, v3
v_cvt_pk_bf16_f32 v4, v2, v3
v_lshlrev_b32 v6, 16, v4              ; m_b
v_and_b32 v5, 0xffff0000, v4
v_add_f32 v5, 0x3727c5ac, v5
v_cvt_pk_bf16_f32 v5, v5, v5
v_and_b32 v5, 0xffff0000, v5
v_sqrt_f32 v5, v5
s_nop 0
v_cvt_pk_bf16_f32 v5, v5, v5
v_and_b32 v5, 0xffff0000, v5
v_rcp_f32 v7, v5                      ; rs
v_sub_f32 v8, 0, v6
s_nop 0
""")
    T = 56
    for i in range(20):
        a(f"v_dot2_f32_bf16 v{T}, v{X+i}, s61, v8")
        a(f"v_dot2_f32_bf16 v{T+1}, v{X+i}, s62, v8")
        a("s_nop 2")
        a(f"v_cvt_pk_bf16_f32 v{T+2}, v{T}, v{T+1}")
        a(f"v_lshlrev_b32 v{T}, 16, v{T+2}")
        a(f"v_and_b32 v{T+1}, 0xffff0000, v{T+2}")
        a(f"v_mul_f32 v{T}, v{T}, v7")
        a(f"v_mul_f32 v{T+1}, v{T+1}, v7")
        a(f"v_cvt_pk_bf16_f32 v{X+i}, v{T}, v{T+1}")
    a(f"""
v_lshrrev_b32 v2, 4, v10
v_mul_u32_u24 v2, 20480, v2
v_lshrrev_b32 v3, 2, v12
v_lshlrev_b32 v3, 10, v3              ; (sub>>2)*1024
v_and_b32 v4, 3, v12
v_lshlrev_b32 v4, 8, v4               ; qd*256
v_and_b32 v5, 15, v10
v_lshlrev_b32 v5, 4, v5
v_add3_u32 v2, v2, v3, v4
v_add_u32 v2, v2, v5
s_mov_b32 s39, {WS_XNF}
""")
    for i in range(5):
        a(f"s_add_u32 s40, s39, {4096*i}")
        a(f"buffer_store_dwordx4 v[{X+4*i}:{X+4*i+3}], v2, s[{S_WS}:{S_WS+3}], s40 offen{STF}")
    a(f"""
v_lshlrev_b32 v3, 3, v10
v_cmp_eq_u32 vcc, 0, v12
s_and_saveexec_b64 s[40:41], vcc
s_mov_b32 s39, {WS_STATS}
buffer_store_dwordx2 v[6:7], v3, s[{S_WS}:{S_WS+3}], s39 offen
s_mov_b64 exec, s[40:41]
v_mov_b32 v2, 0
s_waitcnt vmcnt(6)
""")
    for i in range(20):
        a(f"v_dot2_f32_bf16 v2, v{X+i}, v{WR+i}, v2")
    a("s_nop 3")
    for rot in (1, 2, 4, 8):
        a(f"v_add_f32_dpp v2, v2, v2 row_ror:{rot} row_mask:0xf bank_mask:0xf")
        a("s_nop 1")
    a(f"""
v_cvt_pk_bf16_f32 v2, v2, v2
v_and_b32 v2, 0xffff0000, v2
v_ashrrev_i32 v3, 31, v2
v_or_b32 v3, 0x80000000, v3
v_xor_b32 v2, v2, v3
v_and_b32 v2, 0xffff0000, v2
v_sub_u32 v3, 2047, v10
v_or_b32 v2, v2, v3
v_mov_b32 v3, v2
s_nop 1
v_permlane16_swap_b32 v2, v3
s_nop 1
v_max_u32 v2, v2, v3
v_mov_b32 v3, v2
s_nop 1
v_permlane32_swap_b32 v2, v3
s_nop 1
v_max_u32 v2, v2, v3
s_add_u32 s39, s38, {WS_AMAX}
v_mov_b32 v3, 0
s_mov_b64 exec, 1
buffer_store_dword v2, v3, s[{S_WS}:{S_WS+3}], s39 offen
K0_END:
""")
    if STAMPS:
        a(f"""
s_waitcnt vmcnt(0)
s_memrealtime s[82:83]
s_waitcnt lgkmcnt(0)
s_mov_b64 exec, 1
s_lshl_b32 s38, s2, 3
s_add_u32 s38, s38, s{S_WAVE}
s_lshl_b32 s38, s38, 4
s_add_u32 s38, s38, 0x8200000
v_mov_b32 v10, 0
v_mov_b32 v12, s80
v_mov_b32 v13, s81
v_mov_b32 v14, s82
v_mov_b32 v15, s83
buffer_store_dwordx4 v[12:15], v10, s[{S_WS}:{S_WS+3}], s38 offen
""")
    a(f"""
K0_END2:
s_endpgm
""")
    return a.text()
```

```python
from common import *
import os
STF = os.environ.get('STF', '')
import os
L_W = 0
L_WPHI = 155648
L_ZERO = 157248
L_EX = 0
L_KVO = 40960
EXP = 288
K1_LDS = 158144
K1_BLOCK = 256
K1_VGPR = 256 + 160
K1_ACCOFF = 256
ROT_A = int(os.environ.get('ROT_A', '0')); ROT_B = int(os.environ.get('ROT_B', '0'))
S_WPHI, S_WS = 4, 8
S_RB, S_PAIR, S_WAVE, S_ROT = 32, 33, 37, 73
S_L2E = 44
V_LANE = 1
ACC = 16
WA, WBB = 80, 112
ST1 = Stamper(74, 14)

def emit_softmax(a, P, touch=None):
    PKD, EM, OUT = 144, 164, 184
    for i in range(10):
        a(f"v_cvt_pk_bf16_f32 v{PKD+i}, v{P+2*i}, v{P+2*i+1}")
    for i in range(10):
        a(f"v_lshlrev_b32 v{P+2*i}, 16, v{PKD+i}")
        a(f"v_and_b32 v{P+2*i+1}, 0xffff0000, v{PKD+i}")
    MX, MN = 154, 155
    a(f"v_max3_f32 v{MX}, v{P}, v{P+1}, v{P+2}")
    a(f"v_min3_f32 v{MN}, v{P}, v{P+1}, v{P+2}")
    for i in range(3, 19, 2):
        a(f"v_max3_f32 v{MX}, v{MX}, v{P+i}, v{P+i+1}")
        a(f"v_min3_f32 v{MN}, v{MN}, v{P+i}, v{P+i+1}")
    a(f"v_max_f32 v{MX}, v{MX}, v{P+19}")
    a(f"v_min_f32 v{MN}, v{MN}, v{P+19}")
    AP, AM = 156, 158
    a(f"v_mul_f32 v{AP}, s{S_L2E}, v{MX}")
    a(f"v_mul_f32 v{AM}, s{S_L2E}, v{MN}")
    a(f"v_mov_b32 v{AP+1}, v{AP}")
    a(f"v_mov_b32 v{AM+1}, v{AM}")
    for i in range(10):
        a(f"v_pk_fma_f32 v[{EM+2*i}:{EM+2*i+1}], v[{P+2*i}:{P+2*i+1}], s[{S_L2E}:{S_L2E+1}], v[{AM}:{AM+1}] neg_lo:[1,0,0] neg_hi:[1,0,0]")
        a(f"v_pk_fma_f32 v[{P+2*i}:{P+2*i+1}], v[{P+2*i}:{P+2*i+1}], s[{S_L2E}:{S_L2E+1}], v[{AP}:{AP+1}] neg_lo:[0,0,1] neg_hi:[0,0,1]")
    for i in range(20):
        a(f"v_exp_f32 v{EM+i}, v{EM+i}")
        a(f"v_exp_f32 v{P+i}, v{P+i}")
        if touch and i in (6, 13): touch(1)
    SP, SM = 156, 158
    a("s_nop 0")
    a(f"v_pk_add_f32 v[{SM}:{SM+1}], v[{EM}:{EM+1}], v[{EM+2}:{EM+3}]")
    a(f"v_pk_add_f32 v[{SP}:{SP+1}], v[{P}:{P+1}], v[{P+2}:{P+3}]")
    for i in range(2, 10):
        a(f"v_pk_add_f32 v[{SM}:{SM+1}], v[{SM}:{SM+1}], v[{EM+2*i}:{EM+2*i+1}]")
        a(f"v_pk_add_f32 v[{SP}:{SP+1}], v[{SP}:{SP+1}], v[{P+2*i}:{P+2*i+1}]")
    a(f"v_add_f32 v{SM}, v{SM}, v{SM+1}")
    a(f"v_add_f32 v{SP}, v{SP}, v{SP+1}")
    a(f"v_rcp_f32 v{SM}, v{SM}")
    a(f"v_rcp_f32 v{SP}, v{SP}")
    a("s_nop 0")
    a(f"v_mov_b32 v{SM+1}, v{SM}")
    a(f"v_mov_b32 v{SP+1}, v{SP}")
    for i in range(10):
        a(f"v_pk_mul_f32 v[{P+2*i}:{P+2*i+1}], v[{P+2*i}:{P+2*i+1}], v[{SP}:{SP+1}]")
        a(f"v_pk_mul_f32 v[{EM+2*i}:{EM+2*i+1}], v[{EM+2*i}:{EM+2*i+1}], v[{SM}:{SM+1}]")
    for i in range(10):
        a(f"v_cvt_pk_bf16_f32 v{OUT+i}, v{P+2*i}, v{P+2*i+1}")
    for i in range(10):
        a(f"v_cvt_pk_bf16_f32 v{OUT+10+i}, v{EM+2*i}, v{EM+2*i+1}")
    return OUT

def gen_k1():
    a = Asm()
    a.lines.append(kstart("k1_kernel"))
    ST1.stamp(a, 'entry', 0)
    a(f"""
s_cmp_ge_u32 s2, 256
s_cbranch_scc1 K1_END
s_load_dwordx2 s[52:53], s[0:1], 16
s_load_dwordx4 s[24:27], s[0:1], 48
s_load_dwordx2 s[28:29], s[0:1], 64
s_load_dwordx4 s[60:63], s[0:1], 80
v_and_b32 v{V_LANE}, 63, v0
v_lshrrev_b32 v10, 6, v0
s_nop 0
v_readfirstlane_b32 s{S_WAVE}, v10
s_and_b32 s38, s2, 7
s_lshr_b32 s39, s2, 3
s_and_b32 s40, s38, 3
s_lshl_b32 s40, s40, 2
s_and_b32 s41, s39, 3
s_add_u32 s{S_RB}, s40, s41
s_lshr_b32 s42, s38, 2
s_lshr_b32 s41, s39, 2            ; pl
s_lshl_b32 s40, s42, 3
s_add_u32 s{S_PAIR}, s40, s41
s_and_b32 s40, s39, 3
s_mul_i32 s40, s40, {ROT_A}
s_mul_i32 s{S_ROT}, s41, {ROT_B}
s_add_u32 s{S_ROT}, s{S_ROT}, s40
s_mul_i32 s40, s{S_ROT}, 13108
s_lshr_b32 s40, s40, 16
s_mul_i32 s40, s40, 5
s_sub_u32 s{S_ROT}, s{S_ROT}, s40
s_mov_b32 s{S_L2E}, 0x3fb8aa3b
s_mov_b32 s{S_L2E+1}, 0x3fb8aa3b
s_waitcnt lgkmcnt(0)
s_mov_b32 s{S_WPHI}, s52
s_mov_b32 s{S_WPHI+1}, s53
s_mov_b32 s{S_WPHI+2}, 25600
s_mov_b32 s{S_WPHI+3}, 0x20000
s_mov_b32 s{S_WS}, s62
s_mov_b32 s{S_WS+1}, s63
s_mov_b32 s{S_WS+2}, {WS_BYTES}
s_mov_b32 s{S_WS+3}, 0x20000
v_lshlrev_b32 v2, 4, v{V_LANE}
s_lshl_b32 s38, s{S_RB}, 3
s_lshl_b32 s39, s{S_WAVE}, 1
s_add_u32 s38, s38, s39
s_mul_i32 s46, s38, 20480
s_add_u32 s46, s46, {WS_XNF}
s_mul_i32 s47, s{S_PAIR}, 153600
s_add_u32 s47, s47, {WS_WPF}
s_lshl_b32 s72, s{S_WAVE}, 10
s_mov_b32 s40, s{S_ROT}
""")
    for g in range(5):
        a(f"s_lshl_b32 s41, s40, 12")
        a(f"s_add_u32 s{48+2*g}, s41, s46")
        a(f"s_mul_i32 s41, s40, 30720")
        a(f"s_add_u32 s41, s41, s47")
        a(f"s_add_u32 s{49+2*g}, s41, s72")
        a("s_add_u32 s40, s40, 1")
        a("s_cmp_eq_u32 s40, 5")
        a("s_cselect_b32 s40, 0, s40")
    def issue_part(g, j):
        a(f"buffer_load_dwordx4 a[{16*g+4*j}:{16*g+4*j+3}], v2, s[{S_WS}:{S_WS+3}], s{48+2*g} offen offset:{1024*j}")
        a(f"s_add_u32 s41, s{48+2*g}, 20480")
        a(f"buffer_load_dwordx4 a[{80+16*g+4*j}:{80+16*g+4*j+3}], v2, s[{S_WS}:{S_WS+3}], s41 offen offset:{1024*j}")
        for e in range(2):
            c = 2*j + e
            if c == 7:
                a(f"s_cmp_ge_u32 s{S_WAVE}, 2")
                a(f"s_cbranch_scc1 K1_SKIPC{g}")
            a(f"s_add_u32 m0, s72, {30720*g + 4096*c}")
            a(f"s_add_u32 s41, s{49+2*g}, {4096*c}")
            a(f"buffer_load_dwordx4 v2, s[{S_WS}:{S_WS+3}], s41 offen lds")
            if c == 7:
                a(f"K1_SKIPC{g}:")
    DIST = int(os.environ.get("DIST", "6"))
    for n in range(DIST):
        issue_part(n // 4, n % 4)
        if n == 3: a("s_barrier")
    a(f"""
s_cmp_ge_u32 s{S_WAVE}, 2
s_cbranch_scc1 K1_MISC_Z
s_mul_i32 s38, s{S_PAIR}, 1600
v_lshlrev_b32 v10, 4, v0
s_add_u32 m0, s72, {L_WPHI}
v_cmp_gt_u32 vcc, 100, v0
s_and_saveexec_b64 s[64:65], vcc
buffer_load_dwordx4 v10, s[{S_WPHI}:{S_WPHI+3}], s38 offen lds
s_mov_b64 exec, s[64:65]
s_branch K1_MISC_DONE
K1_MISC_Z:
s_cmp_lg_u32 s{S_WAVE}, 2
s_cbranch_scc1 K1_MISC_DONE
v_mov_b32 v10, 0
v_mov_b32 v11, 0
v_mov_b32 v12, 0
v_mov_b32 v13, 0
v_add_u32 v14, {L_ZERO}, v2
v_cmp_gt_u32 vcc, 56, v{V_LANE}
s_and_saveexec_b64 s[64:65], vcc
ds_write_b128 v14, v[10:13]
s_mov_b64 exec, s[64:65]
K1_MISC_DONE:
v_lshrrev_b32 v3, 4, v{V_LANE}
v_lshlrev_b32 v3, 3, v3
v_bfe_u32 v4, v{V_LANE}, 3, 1
v_lshlrev_b32 v4, 2, v4
v_and_b32 v5, 3, v{V_LANE}
v_add3_u32 v3, v3, v4, v5
v_lshlrev_b32 v3, 4, v3
v_add_u32 v3, 7168, v3
""")
    ST1.stamp(a, 'issued', 1)
    def read_list(s, buf):
        g, j = divmod(s, 4)
        base = 30720*g + 7680*j
        B = WA if buf == 0 else WBB
        L = [f"v_add_u32 v14, {base}, v2\nv_add_u32 v15, {base}, v3\nds_read_b128 v[{B}:{B+3}], v14"]
        for t in range(1, 7):
            L.append(f"ds_read_b128 v[{B+4*t}:{B+4*t+3}], v14 offset:{1024*t}")
        L.append(f"ds_read_b128 v[{B+28}:{B+31}], v15")
        return L
    def issue_list(g, j):
        sub = Asm()
        _a = a
        return sub
    for s in range(20):
        g, j = divmod(s, 4)
        if j == 0:
            ny = 0
            for n in range(4*g+4, min(20, 4*g + DIST)):
                ny += 3 if n % 4 == 3 else 4
            a(f"s_waitcnt vmcnt({ny}) lgkmcnt(0)")
            a("s_barrier")
            ST1.stamp(a, f'b{g}', 4+g)
            for x in read_list(s, s & 1): a(x)
        nxt = read_list(s+1, (s+1) & 1) if j < 3 else []
        if s + DIST < 20:
            issue_part((s + DIST) // 4, (s + DIST) % 4)
        a("s_waitcnt lgkmcnt(0)")
        B = WA if (s & 1) == 0 else WBB
        for t in range(8):
            for tau in range(2):
                d = ACC + 32*tau + 4*t
                c = f"v[{d}:{d+3}]" if s > 0 else "0"
                a(f"v_mfma_f32_16x16x32_bf16 v[{d}:{d+3}], v[{B+4*t}:{B+4*t+3}], a[{80*tau+4*s}:{80*tau+4*s+3}], {c}")
            if nxt and t < 4:
                a(nxt[2*t]); a(nxt[2*t+1])
    ST1.stamp(a, 'kloop1', 9)
    TOUCH = os.environ.get("TOUCH", "1") == "1"
    tl = []
    if TOUCH:
        a(f"""
s_lshr_b32 s41, s2, 3
s_mul_i32 s42, s41, 25600
s_mul_i32 s43, s{S_WAVE}, 6400
s_add_u32 s42, s42, s43
s_add_u32 s66, s42, {WS_WOP}
s_mov_b32 s12, s24
s_mov_b32 s13, s25
s_mov_b32 s14, 1966080
s_mov_b32 s15, 0x20000
s_mov_b32 s16, s26
s_mov_b32 s17, s27
s_mov_b32 s18, 1966080
s_mov_b32 s19, 0x20000
s_mov_b32 s20, s28
s_mov_b32 s21, s29
s_mov_b32 s22, 1966080
s_mov_b32 s23, 0x20000
s_min_u32 s41, s41, 23
s_lshr_b32 s42, s41, 2
s_lshl_b32 s42, s42, 3
s_and_b32 s43, s2, 7
s_add_u32 s42, s42, s43                ; a
s_and_b32 s43, s41, 3
s_mul_i32 s46, s43, 160
s_mul_i32 s47, s{S_WAVE}, 40
s_add_u32 s46, s46, s47
v_lshrrev_b32 v248, 2, v{V_LANE}
v_add_u32 v248, s46, v248
s_movk_i32 s47, 3072
v_mul_lo_u32 v248, v248, s47
v_and_b32 v249, 3, v{V_LANE}
v_lshlrev_b32 v249, 4, v249
s_lshl_b32 s47, s42, 6
v_add3_u32 v248, v248, v249, s47
s_lshl_b32 s46, s42, 5
s_lshl_b32 s47, s43, 3
s_add_u32 s46, s46, s47
s_mul_i32 s46, s46, 1280
s_mul_i32 s47, s{S_WAVE}, 2560
s_add_u32 s67, s46, s47
s_mov_b32 s68, {16*3072}
s_mov_b32 s69, {24*3072}
""")
        for i in range(7):
            tl.append(f"s_add_u32 s70, s66, {1024*i}\nbuffer_load_dwordx4 v[252:255], v2, s[{S_WS}:{S_WS+3}], s70 offen")
        for so in ("0", "s68", "s69"):
            tl.append(f"buffer_load_dwordx4 v[252:255], v248, s[12:15], {so} offen")
            tl.append(f"buffer_load_dwordx4 v[252:255], v248, s[16:19], {so} offen")
        for off in (0, 1024, 1536):
            tl.append(f"buffer_load_dwordx4 v[252:255], v2, s[20:23], s67 offen offset:{off}")
    def touch(n):
        for _ in range(n):
            if tl: a(tl.pop(0))
    a(f"""
v_and_b32 v9, 15, v{V_LANE}
v_mul_u32_u24 v10, {EXP}, v9          ; tok16*EXP
v_lshrrev_b32 v11, 4, v{V_LANE}       ; quad
v_lshrrev_b32 v12, 1, v11
v_mul_u32_u24 v12, 40, v12
v_and_b32 v13, 1, v11
v_lshlrev_b32 v13, 3, v13
v_add3_u32 v12, v12, v13, v10
v_add_u32 v12, 160, v12
v_mul_u32_u24 v13, 80, v11
v_add_u32 v13, v13, v10
v_subrev_u32 v13, 160, v13
v_and_b32 v14, 3, v{V_LANE}
v_bfe_u32 v15, v{V_LANE}, 2, 2
v_mul_u32_u24 v15, 40, v15
v_and_b32 v8, 1, v11
v_mul_u32_u24 v8, 800, v8
v_add_u32 v15, v15, v8
v_add_u32 v15, {L_WPHI}, v15
v_mov_b32 v8, {L_ZERO}
v_cmp_eq_u32 vcc, v14, v11
s_nop 1
v_cndmask_b32 v15, v8, v15, vcc
v_mul_u32_u24 v7, 1280, v11
v_lshlrev_b32 v9, 4, v9
v_add_u32 v7, v7, v9
s_barrier
""")
    PBs = [204, 80]; VPs = [216, 92]
    for tau in range(2):
        A0 = ACC + 32*tau
        PB, VP = PBs[tau], VPs[tau]
        for t in range(5):
            a(f"v_cvt_pk_bf16_f32 v{PB+2*t}, v{A0+4*t}, v{A0+4*t+1}")
            a(f"v_cvt_pk_bf16_f32 v{PB+2*t+1}, v{A0+4*t+2}, v{A0+4*t+3}")
        a(f"v_mov_b32 v{PB+10}, 0")
        a(f"v_mov_b32 v{PB+11}, 0")
        for t in range(3):
            a(f"v_cvt_pk_bf16_f32 v{VP+2*t}, v{A0+20+4*t}, v{A0+20+4*t+1}")
            a(f"v_cvt_pk_bf16_f32 v{VP+2*t+1}, v{A0+20+4*t+2}, v{A0+20+4*t+3}")
        a(f"""
s_lshl_b32 s39, s{S_WAVE}, 1
s_add_u32 s39, s39, {tau}
s_mul_i32 s38, s39, {16*EXP}
s_add_u32 s38, s38, {L_EX}
v_add_u32 v4, s38, v12
v_add_u32 v{100+tau}, s38, v13
v_add_u32 v6, s38, v10
""")
        a(f"ds_write_b64 v4, v[{VP}:{VP+1}]")
        a(f"ds_write_b64 v4, v[{VP+2}:{VP+3}] offset:16")
        a("s_mov_b32 exec_lo, 0x0000ffff")
        a("s_mov_b32 exec_hi, 0x0000ffff")
        a(f"ds_write_b64 v4, v[{VP+4}:{VP+5}] offset:32")
        a(f"v_mov_b32 v222, 0x00003f80")
        a(f"v_mov_b32 v223, 0")
        a(f"ds_write_b64 v6, v[222:223] offset:240")
        a("s_mov_b64 exec, -1")
        touch(2)
    AF = 224
    def proj_mfma(t):
        pb = AF + 12 * (t & 1)
        for tau in range(2):
            A0 = ACC + 32*tau
            for c in range(3):
                cc = "0" if c == 0 else f"v[{A0+4*t}:{A0+4*t+3}]"
                a(f"v_mfma_f32_16x16x32_bf16 v[{A0+4*t}:{A0+4*t+3}], v[{pb+4*c}:{pb+4*c+3}], v[{PBs[tau]+4*c}:{PBs[tau]+4*c+3}], {cc}")
    for t in range(5):
        b = AF + 12 * (t & 1)
        for c in range(3):
            a(f"ds_read_b64_tr_b16 v[{b+4*c}:{b+4*c+1}], v15 offset:{(8*c)*40 + 8*t}")
            if c < 2:
                a(f"ds_read_b64_tr_b16 v[{b+4*c+2}:{b+4*c+3}], v15 offset:{(8*c+4)*40 + 8*t}")
            else:
                a(f"v_mov_b32 v{b+4*c+2}, 0")
                a(f"v_mov_b32 v{b+4*c+3}, 0")
        if t > 0:
            a("s_waitcnt lgkmcnt(5)")
            proj_mfma(t-1)
    a("s_waitcnt lgkmcnt(0)")
    proj_mfma(4)
    touch(2)
    a("s_nop 5")
    for tau in range(2):
        A0 = ACC + 32*tau
        a(f"""
s_lshl_b32 s39, s{S_WAVE}, 1
s_add_u32 s39, s39, {tau}
s_lshl_b32 s40, s{S_RB}, 3
s_add_u32 s39, s39, s40
s_lshl_b32 s39, s39, 5
s_lshl_b32 s40, s{S_PAIR}, 1
s_add_u32 s39, s39, s40
s_mul_i32 s39, s39, 1280
s_add_u32 s39, s39, {WS_PQ}
""")
        touch(3)
        OUTR = emit_softmax(a, A0, touch)
        a("s_mov_b32 exec_lo, 0")
        for c in range(5):
            a(f"ds_write_b128 v{100+tau}, v[{OUTR+4*c}:{OUTR+4*c+3}] offset:{16*c}")
        a("s_mov_b32 exec_lo, -1")
        a("s_mov_b32 exec_hi, 0")
        for c in range(5):
            a(f"buffer_store_dwordx4 v[{OUTR+4*c}:{OUTR+4*c+3}], v7, s[{S_WS}:{S_WS+3}], s39 offen offset:{256*c}{STF}")
        a("s_mov_b64 exec, -1")
        a("s_nop 1")
    a("s_waitcnt lgkmcnt(0)")
    a("s_barrier")
    ST1.stamp(a, 'epi1', 10)
    a(f"""
s_lshr_b32 s40, s{S_WAVE}, 1
s_and_b32 s41, s{S_WAVE}, 1
v_lshrrev_b32 v10, 2, v{V_LANE}
v_mul_u32_u24 v10, {EXP}, v10
v_add_u32 v10, {L_EX}, v10
v_and_b32 v11, 3, v{V_LANE}
v_lshlrev_b32 v12, 3, v11
s_mul_i32 s42, s40, 80
v_add3_u32 v13, v10, v12, s42
s_mul_i32 s42, s40, 40
s_add_u32 s42, s42, 160
v_add_u32 v14, s42, v12
s_add_u32 s43, s42, 32
v_mov_b32 v15, 240
v_mov_b32 v9, s43
v_cmp_eq_u32 vcc, 0, v11
s_nop 1
v_cndmask_b32 v15, v15, v9, vcc
s_cmp_eq_u32 s41, 0
s_cselect_b64 vcc, -1, 0
s_nop 1
v_cndmask_b32 v14, v15, v14, vcc
v_add_u32 v14, v14, v10
""")
    KAB = [80, 112]
    def kvreads(ks, KA):
        o = ks * 32 * EXP
        a(f"ds_read_b64_tr_b16 v[{KA}:{KA+1}], v14 offset:{o}")
        a(f"ds_read_b64_tr_b16 v[{KA+2}:{KA+3}], v14 offset:{o + 16*EXP}")
        for Tt in range(3):
            a(f"ds_read_b64_tr_b16 v[{KA+4+4*Tt}:{KA+5+4*Tt}], v13 offset:{o + 32*Tt}")
            a(f"ds_read_b64_tr_b16 v[{KA+6+4*Tt}:{KA+7+4*Tt}], v13 offset:{o + 16*EXP + 32*Tt}")
    kvreads(0, KAB[0])
    for ks in range(4):
        KA = KAB[ks & 1]
        if ks < 3:
            kvreads(ks+1, KAB[(ks+1) & 1])
            a("s_waitcnt lgkmcnt(8)")
        else:
            a("s_waitcnt lgkmcnt(0)")
        for Tt in range(3):
            c = f"v[{ACC+4*Tt}:{ACC+4*Tt+3}]" if ks > 0 else "0"
            a(f"v_mfma_f32_16x16x32_bf16 v[{ACC+4*Tt}:{ACC+4*Tt+3}], v[{KA}:{KA+3}], v[{KA+4+4*Tt}:{KA+7+4*Tt}], {c}")
    a(f"""
v_lshrrev_b32 v10, 4, v{V_LANE}
v_mul_u32_u24 v10, 640, v10
v_and_b32 v11, 15, v{V_LANE}
v_lshlrev_b32 v11, 2, v11
v_add_u32 v10, v10, v11
s_mul_i32 s42, s40, 3360
s_mul_i32 s43, s41, 2560
s_add_u32 s42, s42, s43
s_add_u32 s42, s42, {L_KVO}
v_add_u32 v10, s42, v10
s_cmp_eq_u32 s41, 0
s_cselect_b32 s46, -1, -1
s_cselect_b32 s47, -1, 0
s_cselect_b32 s38, -1, 0xffff
s_cselect_b32 s39, -1, 0
s_mov_b32 s64, 0x00ff00ff
s_mov_b32 s65, 0x00ff00ff
s_nop 4
""")
    for Tt in range(3):
        for i in range(4):
            lo, hi = ("s46", "s47") if i == 0 else ("s38", "s39")
            if Tt < 2:
                a(f"s_mov_b32 exec_lo, {lo}")
                a(f"s_mov_b32 exec_hi, {hi}")
            else:
                a(f"s_and_b32 exec_lo, {lo}, s64")
                a(f"s_and_b32 exec_hi, {hi}, s65")
            a(f"ds_write_b32 v10, v{ACC+4*Tt+i} offset:{160*i + 64*Tt}")
    a(f"""
s_mov_b64 exec, -1
s_waitcnt lgkmcnt(0)
s_barrier
v_lshlrev_b32 v10, 2, v0
v_add_u32 v11, {L_KVO}, v10
""")
    for i in range(7):
        a(f"ds_read_b32 v{16+i}, v11 offset:{1024*i}")
    a(f"s_mul_i32 s42, s{S_PAIR}, 6720")
    a("s_waitcnt lgkmcnt(0)")
    for i in range(6):
        a(f"s_add_u32 s43, s42, {1024*i}")
        a(f"buffer_atomic_add_f32 v{16+i}, v10, s[{S_WS}:{S_WS+3}], s43 offen")
    a(f"""
s_add_u32 s43, s42, 6144
v_cmp_gt_u32 vcc, 144, v0
s_and_saveexec_b64 s[64:65], vcc
s_cbranch_execz K1_AT_DONE
buffer_atomic_add_f32 v22, v10, s[{S_WS}:{S_WS+3}], s43 offen
K1_AT_DONE:
s_mov_b64 exec, s[64:65]
""")
    a(f"""
s_cmp_lg_u32 s2, 0
s_cbranch_scc1 K1_NOKEY
s_cmp_lg_u32 s{S_WAVE}, 3
s_cbranch_scc1 K1_NOKEY
v_lshlrev_b32 v14, 5, v{V_LANE}
s_mov_b32 s64, {WS_AMAX}
buffer_load_dwordx4 v[136:139], v14, s[{S_WS}:{S_WS+3}], s64 offen
buffer_load_dwordx4 v[140:143], v14, s[{S_WS}:{S_WS+3}], s64 offen offset:16
s_waitcnt vmcnt(0)
v_max_u32 v136, v136, v137
v_max_u32 v138, v138, v139
v_max_u32 v140, v140, v141
v_max_u32 v142, v142, v143
v_max_u32 v136, v136, v138
v_max_u32 v140, v140, v142
v_max_u32 v136, v136, v140
s_nop 1
v_max_u32_dpp v136, v136, v136 row_ror:1 row_mask:0xf bank_mask:0xf
s_nop 1
v_max_u32_dpp v136, v136, v136 row_ror:2 row_mask:0xf bank_mask:0xf
s_nop 1
v_max_u32_dpp v136, v136, v136 row_ror:4 row_mask:0xf bank_mask:0xf
s_nop 1
v_max_u32_dpp v136, v136, v136 row_ror:8 row_mask:0xf bank_mask:0xf
v_mov_b32 v137, v136
s_nop 1
v_permlane16_swap_b32 v136, v137
s_nop 1
v_max_u32 v136, v136, v137
v_mov_b32 v137, v136
s_nop 1
v_permlane32_swap_b32 v136, v137
s_nop 1
v_max_u32 v136, v136, v137
v_mov_b32 v14, 0
s_mov_b32 s64, {WS_KEY}
s_mov_b64 exec, 1
buffer_store_dword v136, v14, s[{S_WS}:{S_WS+3}], s64 offen
s_mov_b64 exec, -1
K1_NOKEY:
""")
    ST1.stamp(a, 'kv', 11)
    ST1.stamp(a, 'end', 13)
    ST1.flush(a, S_WS, WS_TS1, S_WAVE, "K1_TSF")
    a("K1_END:")
    a("s_endpgm")
    return a.text()
```

```python
from common import *
K2_GRID = 208
K2_LDS = 114688
K2_VGPR = 256
NAUX = 48
S_X, S_WS, S_DBG, S_OUT, S_G, S_U, S_D = 4, 8, 12, 16, 20, 24, 28
S_WAVE, S_RBK, S_CB, S_IDX, S_KEY = 32, 33, 34, 35, 36
V_LANE = 1
OPK = 16
KVP = 26
PQB = 74
DAC = 202
KVA = 202
def WOF_(k):
    return 122 + 4*k
L_OF = 0
L_RED = 81920

ST2 = Stamper(0, 7, regs=[72,74,76,78,96,98,100])
def gen_k2():
    a = Asm()
    a.lines.append(kstart("k2_kernel"))
    ST2.stamp(a, "entry", 0)
    a(f"""
s_cmp_ge_u32 s2, {K2_GRID}
s_cbranch_scc1 K2_END
s_load_dwordx2 s[48:49], s[0:1], 0
s_load_dwordx4 s[52:55], s[0:1], 48
s_load_dwordx4 s[56:59], s[0:1], 64
s_load_dwordx4 s[60:63], s[0:1], 80
v_and_b32 v{V_LANE}, 63, v0
v_lshrrev_b32 v10, 6, v0
s_nop 0
v_readfirstlane_b32 s{S_WAVE}, v10
s_waitcnt lgkmcnt(0)
s_mov_b32 s{S_X}, s48
s_mov_b32 s{S_X+1}, s49
s_mov_b32 s{S_X+2}, 2621440
s_mov_b32 s{S_X+3}, 0x20000
s_mov_b32 s{S_G}, s52
s_mov_b32 s{S_G+1}, s53
s_mov_b32 s{S_G+2}, 1966080
s_mov_b32 s{S_G+3}, 0x20000
s_mov_b32 s{S_U}, s54
s_mov_b32 s{S_U+1}, s55
s_mov_b32 s{S_U+2}, 1966080
s_mov_b32 s{S_U+3}, 0x20000
s_mov_b32 s{S_D}, s56
s_mov_b32 s{S_D+1}, s57
s_mov_b32 s{S_D+2}, 1966080
s_mov_b32 s{S_D+3}, 0x20000
s_mov_b32 s{S_OUT}, s58
s_mov_b32 s{S_OUT+1}, s59
s_mov_b32 s{S_OUT+2}, 2621440
s_mov_b32 s{S_OUT+3}, 0x20000
s_mov_b32 s{S_DBG}, s60
s_mov_b32 s{S_DBG+1}, s61
s_mov_b32 s{S_DBG+2}, 256
s_mov_b32 s{S_DBG+3}, 0x20000
s_mov_b32 s{S_WS}, s62
s_mov_b32 s{S_WS+1}, s63
s_mov_b32 s{S_WS+2}, {WS_BYTES}
s_mov_b32 s{S_WS+3}, 0x20000
s_add_u32 s64, s62, {WS_KEY}
s_addc_u32 s65, s63, 0
s_load_dword s80, s[64:65], 0
s_cmp_lt_u32 s2, {NAUX}
s_cbranch_scc1 K2_AUX
""")
    gen_main(a)
    a("K2_AUX:")
    gen_aux(a)
    a("K2_END:")
    a("s_endpgm")
    return a.text()

def emit_idx(a, wait):
    a('s_waitcnt lgkmcnt(0)')
    a(f"s_mov_b32 s{S_KEY}, s80")
    a("s_and_b32 s81, s80, 0x7ff")
    a(f"s_sub_u32 s{S_IDX}, 2047, s81")

def gen_main(a):
    a(f"""
s_sub_u32 s38, s2, {NAUX}
s_and_b32 s39, s38, 7           ; xcd
s_lshr_b32 s40, s38, 3          ; j 0..19
s_and_b32 s41, s40, 3
s_lshl_b32 s39, s39, 2
s_add_u32 s{S_RBK}, s39, s41
s_lshr_b32 s{S_CB}, s40, 2
; ---- addresses ----
v_and_b32 v10, 31, v{V_LANE}
v_lshrrev_b32 v11, 3, v10
v_lshlrev_b32 v11, 2, v11
v_and_b32 v12, 3, v10
v_add_u32 v11, v11, v12          ; q'
v_bfe_u32 v12, v10, 2, 1
v_mul_u32_u24 v12, 10, v12
v_add_u32 v12, v12, v11
v_mov_b32 v13, 20
v_cmp_gt_u32 vcc, 10, v11
s_nop 1
v_cndmask_b32 v12, v13, v12, vcc ; r
v_mul_u32_u24 v12, 160, v12
v_lshrrev_b32 v13, 5, v{V_LANE}  ; hf
v_lshlrev_b32 v14, 5, v13
v_add_u32 v2, v12, v14
v_mov_b32 v3, v12
v_bfe_u32 v11, v10, 4, 1
v_mul_u32_u24 v11, 40960, v11
v_lshlrev_b32 v14, 8, v13
v_and_b32 v15, 15, v10
v_lshlrev_b32 v15, 4, v15
v_add3_u32 v4, v11, v14, v15
s_lshl_b32 s42, s{S_WAVE}, 2              ; head0 = 4w
s_mul_i32 s43, s42, 3360
s_lshl_b32 s44, s{S_RBK}, 2               ; tt0
s_lshl_b32 s44, s44, 5
s_add_u32 s44, s44, s42
s_mul_i32 s44, s44, 1280
s_add_u32 s44, s44, {WS_PQ}
s_and_b32 s45, s{S_WAVE}, 3               ; nu
s_lshr_b32 s46, s{S_WAVE}, 2              ; eta
s_lshl_b32 s47, s{S_CB}, 2
s_add_u32 s47, s47, s45
s_mul_i32 s47, s47, 40
s_mul_i32 s66, s46, 20
s_add_u32 s47, s47, s66
s_lshl_b32 s47, s47, 10
s_add_u32 s47, s47, {WS_WOP}
v_lshlrev_b32 v5, 4, v{V_LANE}
""")
    def load_pq(h):
        pb = PQB + 24*(h & 1)
        a(f"s_add_u32 s66, s44, {1280*h}")
        a(f"s_add_u32 s67, s66, {2*40960}")
        for tau in range(2):
            sb = "s66" if tau == 0 else "s67"
            for s in range(3):
                r = pb + 12*tau + 4*s
                if s == 2:
                    for j in range(4):
                        a(f"v_mov_b32 v{r+j}, 0")
                    a("s_mov_b32 exec_hi, 0")
                a(f"buffer_load_dwordx4 v[{r}:{r+3}], v4, s[{S_WS}:{S_WS+3}], {sb} offen offset:{512*s}")
                if s == 2:
                    a("s_mov_b32 exec_hi, -1")
    a(f"""
s_add_u32 s66, s43, {WS_KVACC}
v_lshlrev_b32 v9, 4, v{V_LANE}
s_mov_b32 m0, s43
""")
    for i in range(14):
        if i == 13:
            a("s_mov_b64 exec, 0xff")
        a(f"buffer_load_dwordx4 v9, s[{S_WS}:{S_WS+3}], s66 offen lds")
        if i < 13:
            a(f"s_add_u32 m0, m0, 1024")
            a(f"s_add_u32 s66, s66, 1024")
    a("s_mov_b64 exec, -1")
    load_pq(0)
    load_pq(1)
    a("s_barrier")
    def load_wo(k):
        a(f"s_add_u32 s67, s47, {4096*(k//4)}")
        a(f"buffer_load_dwordx4 v[{WOF_(k)}:{WOF_(k)+3}], v5, s[{S_WS}:{S_WS+3}], s67 offen offset:{1024*(k%4)}")
    for k in range(5):
        load_wo(k)
    a(f"""
s_mul_i32 s66, s{S_WAVE}, 10240
v_lshlrev_b32 v6, 4, v{V_LANE}
v_add_u32 v6, s66, v6
s_mov_b32 s68, 0x358637bd      ; 1e-6
v_add_u32 v2, s43, v2
v_add_u32 v3, s43, v3
""")
    ST2.stamp(a, 'issued', 1)
    a("s_waitcnt vmcnt(17)")
    for h in range(4):
        kb = KVA
        for s_ in range(3):
            vo = 2 if s_ < 2 else 3
            a(f"ds_read_b128 v[{kb+8*s_}:{kb+8*s_+3}], v{vo} offset:{3360*h + 64*s_}")
            a(f"ds_read_b128 v[{kb+8*s_+4}:{kb+8*s_+7}], v{vo} offset:{3360*h + 64*s_ + 16}")
        a("s_waitcnt lgkmcnt(0)")
        for i in range(12):
            a(f"v_cvt_pk_bf16_f32 v{KVP+12*h+i}, v{kb+2*i}, v{kb+2*i+1}")
    a("s_barrier")
    waits = [11, 11, 6, 8]
    for h in range(4):
        pb = PQB + 24*(h & 1)
        a(f"s_waitcnt vmcnt({waits[h]})")
        for tau in range(2):
            for s_ in range(3):
                c = f"v[{DAC+16*tau}:{DAC+16*tau+15}]" if s_ > 0 else "0"
                a(f"v_mfma_f32_32x32x16_bf16 v[{DAC+16*tau}:{DAC+16*tau+15}], v[{KVP+12*h+4*s_}:{KVP+12*h+4*s_+3}], v[{pb+12*tau+4*s_}:{pb+12*tau+4*s_+3}], {c}")
        if h < 2:
            load_pq(h + 2)
        elif h == 2:
            for k in range(5, 13): load_wo(k)
        else:
            for k in range(13, 20): load_wo(k)
        a("s_nop 7")
        a("s_nop 3")
        for tau in range(2):
            d = DAC + 16*tau
            a(f"v_cvt_pk_bf16_f32 v10, v{d+10}, v{d+10}")
            a(f"v_and_b32 v10, 0xffff0000, v10")
            a(f"v_add_f32 v10, s68, v10")
            a(f"v_cvt_pk_bf16_f32 v10, v10, v10")
            a(f"v_and_b32 v10, 0xffff0000, v10")
            a(f"v_rcp_f32 v10, v10")
            for i in range(5):
                a(f"v_cvt_pk_bf16_f32 v{OPK+i}, v{d+2*i}, v{d+2*i+1}")
            a(f"v_mov_b32 v11, v10")
            for i in range(5):
                a(f"v_lshlrev_b32 v{d+2*i}, 16, v{OPK+i}")
                a(f"v_and_b32 v{d+2*i+1}, 0xffff0000, v{OPK+i}")
            for i in range(5):
                a(f"v_pk_mul_f32 v[{d+2*i}:{d+2*i+1}], v[{d+2*i}:{d+2*i+1}], v[10:11]")
            for i in range(5):
                a(f"v_cvt_pk_bf16_f32 v{OPK+5+i}, v{d+2*i}, v{d+2*i+1}")
            for i in range(5):
                rho = 5*h + i
                a(f"ds_write_b32 v6, v{OPK+5+i} offset:{((rho//4)*2+tau)*1024 + 4*(rho%4)}")
    ST2.stamp(a, 'ophase', 2)
    XR, ST = 26, 34
    a(f"""
s_lshl_b32 s66, s{S_RBK}, 6
s_lshl_b32 s67, s46, 5
s_add_u32 s66, s66, s67
v_and_b32 v10, 31, v{V_LANE}
v_add_u32 v10, s66, v10                ; token
v_lshlrev_b32 v11, 3, v10
s_mov_b32 s67, {WS_STATS}
buffer_load_dwordx2 v[{ST}:{ST+1}], v11, s[{S_WS}:{S_WS+3}], s67 offen
s_movk_i32 s67, 1280
v_mul_lo_u32 v7, v10, s67
s_lshl_b32 s67, s{S_CB}, 8
s_lshl_b32 s69, s45, 6
s_add_u32 s67, s67, s69
v_lshrrev_b32 v11, 5, v{V_LANE}
v_lshlrev_b32 v11, 5, v11
v_add3_u32 v7, v7, v11, s67
buffer_load_dwordx4 v[{XR}:{XR+3}], v7, s[{S_X}:{S_X+3}], 0 offen
buffer_load_dwordx4 v[{XR+4}:{XR+7}], v7, s[{S_X}:{S_X+3}], 0 offen offset:16
v_mov_b32 v8, v10
s_waitcnt vmcnt(10) lgkmcnt(0)
s_barrier
s_mul_i32 s66, s46, 40960
v_lshlrev_b32 v6, 4, v{V_LANE}
v_add_u32 v6, s66, v6
""")
    BF = 36
    def rd(k, buf):
        a(f"ds_read_b128 v[{BF+8*buf}:{BF+8*buf+3}], v6 offset:{2048*k}")
        a(f"ds_read_b128 v[{BF+8*buf+4}:{BF+8*buf+7}], v6 offset:{2048*k+1024}")
    emit_idx(a, '')
    a(f"""
s_lshl_b32 s66, s{S_RBK}, 6
s_lshl_b32 s67, s46, 5
s_add_u32 s66, s66, s67
s_sub_u32 s67, s{S_IDX}, s66
s_cmp_lt_u32 s67, 32
s_cselect_b32 s71, 1, 0
s_cmp_eq_u32 s71, 0
s_cbranch_scc1 K2_NOOWN_E
v_mov_b32 v10, 0
K2_POLL:
buffer_load_dword v11, v10, s[{S_DBG}:{S_DBG+3}], 0 offen sc0 sc1
s_waitcnt vmcnt(0)
s_nop 0
v_readfirstlane_b32 s69, v11
s_nop 3
s_cmp_ge_u32 s69, {NAUX}
s_cbranch_scc1 K2_POLLED
s_sleep 2
s_branch K2_POLL
K2_POLLED:
v_and_b32 v10, 31, v{V_LANE}
v_lshlrev_b32 v10, 2, v10
v_lshrrev_b32 v11, 5, v{V_LANE}
v_mul_u32_u24 v11, 61440, v11
v_add_u32 v10, v10, v11
s_lshl_b32 s69, s{S_CB}, 9
s_lshl_b32 s70, s45, 7
s_add_u32 s69, s69, s70
s_add_u32 s69, s69, {WS_YPART}
""")
    for p in range(24):
        a(f"s_add_u32 s70, s69, {2560*p}")
        a(f"buffer_load_dword v{80+p}, v10, s[{S_WS}:{S_WS+3}], s70 offen sc0 sc1")
    a("K2_NOOWN_E:")
    rd(0, 0)
    for k in range(20):
        if k == 13:
            a("s_waitcnt vmcnt(3)")
        if k < 19:
            rd(k+1, (k+1)&1)
            a("s_waitcnt lgkmcnt(2)")
        else:
            a("s_waitcnt lgkmcnt(0)")
        b = BF + 8*(k&1)
        for tau in range(2):
            c = f"v[{DAC+16*tau}:{DAC+16*tau+15}]" if k > 0 else "0"
            a(f"v_mfma_f32_32x32x16_bf16 v[{DAC+16*tau}:{DAC+16*tau+15}], v[{WOF_(k)}:{WOF_(k)+3}], v[{b+4*tau}:{b+4*tau+3}], {c}")
    ST2.stamp(a, 'gemm', 3)
    a(f"""
s_nop 7
s_nop 3
s_lshl_b32 s66, s{S_WAVE}, 12
s_add_u32 s66, s66, {L_RED}
v_lshlrev_b32 v6, 4, v{V_LANE}
v_add_u32 v6, s66, v6
s_xor_b32 s67, s{S_WAVE}, 4
s_lshl_b32 s67, s67, 12
s_add_u32 s67, s67, {L_RED}
v_lshlrev_b32 v9, 4, v{V_LANE}
v_add_u32 v9, s67, v9
s_cmp_eq_u32 s46, 0
s_cbranch_scc0 K2_ETA1
""")
    for q in range(4):
        a(f"ds_write_b128 v6, v[{DAC+16+4*q}:{DAC+16+4*q+3}] offset:{1024*q}")
    a("s_branch K2_ETA_J")
    a("K2_ETA1:")
    for q in range(4):
        a(f"ds_write_b128 v6, v[{DAC+4*q}:{DAC+4*q+3}] offset:{1024*q}")
    for q in range(16):
        a(f"v_mov_b32 v{DAC+q}, v{DAC+16+q}")
    a("K2_ETA_J:")
    a("s_waitcnt lgkmcnt(0)")
    a("s_barrier")
    RD = 52
    for q in range(4):
        a(f"ds_read_b128 v[{RD+4*q}:{RD+4*q+3}], v9 offset:{1024*q}")
    a('s_waitcnt lgkmcnt(0)')
    for q in range(16):
        a(f"v_add_f32 v{DAC+q}, v{DAC+q}, v{RD+q}")
    Y = 120
    for q in range(16):
        a(f"v_mov_b32 v{Y+q}, 0")
    a(f"""
s_cmp_eq_u32 s71, 0
s_cbranch_scc1 K2_NOOWN
""")
    a("s_waitcnt vmcnt(0)")
    for p in range(1, 24):
        a(f"v_add_f32 v80, v80, v{80+p}")
    a(f"""
v_mov_b32 v81, v80
s_nop 1
v_permlane32_swap_b32 v80, v81
s_nop 1
v_add_f32 v80, v80, v81
v_cvt_pk_bf16_f32 v80, v80, v80
v_and_b32 v80, 0xffff0000, v80
; r_sel
s_and_b32 s69, s{S_KEY}, 0xffff0000
s_xor_b32 s70, s69, 0x80000000
s_not_b32 s71, s69
s_and_b32 s71, s71, 0xffff0000
s_cmp_lt_i32 s69, 0
s_cselect_b32 s69, s70, s71         ; r bits
v_mov_b32 v81, s69
v_mul_f32 v81, 0xbfb8aa3b, v81
v_exp_f32 v81, v81
s_nop 0
v_add_f32 v81, 1.0, v81
v_rcp_f32 v81, v81
s_nop 0
v_cvt_pk_bf16_f32 v81, v81, v81
v_and_b32 v81, 0xffff0000, v81
v_mul_f32 v80, v80, v81
v_cvt_pk_bf16_f32 v80, v80, v80
v_and_b32 v80, 0xffff0000, v80
s_lshl_b32 s69, s{S_WAVE}, 8
v_and_b32 v10, 31, v{V_LANE}
v_lshlrev_b32 v10, 2, v10
v_add_u32 v10, s69, v10
ds_write_b32 v10, v80
v_lshrrev_b32 v11, 5, v{V_LANE}
v_lshlrev_b32 v11, 6, v11
v_add_u32 v11, s69, v11
s_waitcnt lgkmcnt(0)
ds_read_b128 v[{Y}:{Y+3}], v11
ds_read_b128 v[{Y+4}:{Y+7}], v11 offset:16
ds_read_b128 v[{Y+8}:{Y+11}], v11 offset:32
ds_read_b128 v[{Y+12}:{Y+15}], v11 offset:48
s_waitcnt lgkmcnt(0)
v_cmp_eq_u32 vcc, s{S_IDX}, v8
s_nop 1
""")
    for q in range(16):
        a(f"v_cndmask_b32 v{Y+q}, 0, v{Y+q}, vcc")
    a("K2_NOOWN:")
    ST2.stamp(a, 'moe', 4)
    a("s_waitcnt vmcnt(0)")
    T = 140
    a(f"v_sub_f32 v{T+20}, 0, v{ST}")
    for q in range(8):
        xr = XR + q
        x0, x1 = T, T+1
        a(f"v_lshlrev_b32 v{x0}, 16, v{xr}")
        a(f"v_and_b32 v{x1}, 0xffff0000, v{xr}")
        a(f"v_cvt_pk_bf16_f32 v{T+2}, v{DAC+2*q}, v{DAC+2*q+1}")
        a(f"v_lshlrev_b32 v{T+3}, 16, v{T+2}")
        a(f"v_and_b32 v{T+4}, 0xffff0000, v{T+2}")
        a(f"v_add_f32 v{T+3}, v{x0}, v{T+3}")
        a(f"v_add_f32 v{T+4}, v{x1}, v{T+4}")
        a(f"v_cvt_pk_bf16_f32 v{T+2}, v{T+3}, v{T+4}")
        a(f"v_lshlrev_b32 v{T+3}, 16, v{T+2}")
        a(f"v_and_b32 v{T+4}, 0xffff0000, v{T+2}")
        a(f"v_add_f32 v{x0}, v{x0}, v{T+20}")
        a(f"v_add_f32 v{x1}, v{x1}, v{T+20}")
        a(f"v_cvt_pk_bf16_f32 v{T+5}, v{x0}, v{x1}")
        a(f"v_lshlrev_b32 v{x0}, 16, v{T+5}")
        a(f"v_and_b32 v{x1}, 0xffff0000, v{T+5}")
        a(f"v_mul_f32 v{x0}, v{x0}, v{ST+1}")
        a(f"v_mul_f32 v{x1}, v{x1}, v{ST+1}")
        a(f"v_cvt_pk_bf16_f32 v{T+5}, v{x0}, v{x1}")
        a(f"v_lshlrev_b32 v{x0}, 16, v{T+5}")
        a(f"v_and_b32 v{x1}, 0xffff0000, v{T+5}")
        a(f"v_add_f32 v{x0}, v{x0}, v{Y+2*q}")
        a(f"v_add_f32 v{x1}, v{x1}, v{Y+2*q+1}")
        a(f"v_cvt_pk_bf16_f32 v{T+5}, v{x0}, v{x1}")
        a(f"v_lshlrev_b32 v{x0}, 16, v{T+5}")
        a(f"v_and_b32 v{x1}, 0xffff0000, v{T+5}")
        a(f"v_add_f32 v{x0}, v{x0}, v{T+3}")
        a(f"v_add_f32 v{x1}, v{x1}, v{T+4}")
        a(f"v_cvt_pk_bf16_f32 v{T+8+q}, v{x0}, v{x1}")
    a(f"buffer_store_dwordx4 v[{T+8}:{T+11}], v7, s[{S_OUT}:{S_OUT+3}], 0 offen")
    a(f"buffer_store_dwordx4 v[{T+12}:{T+15}], v7, s[{S_OUT}:{S_OUT+3}], 0 offen offset:16")
    ST2.stamp(a, 'end', 5)
    ST2.flush(a, S_WS, WS_TS2, S_WAVE, "K2_TSF_M")
    a("s_branch K2_END")

def gen_aux(a):
    GW, UW, DW = 16, 36, 56
    L_XN, L_P, L_H, L_Y = 0, 4096, 8192, 12288
    a(f"""
v_lshrrev_b32 v10, 2, v0
s_movk_i32 s38, 3072
v_mul_lo_u32 v11, v10, s38
v_and_b32 v12, 3, v0
v_lshlrev_b32 v12, 4, v12
s_lshl_b32 s39, s2, 6
v_add3_u32 v2, v11, v12, s39
""")
    for i in range(5):
        a(f"s_mov_b32 s40, {i*128*3072}")
        a(f"buffer_load_dwordx4 v[{GW+4*i}:{GW+4*i+3}], v2, s[{S_G}:{S_G+3}], s40 offen")
        a(f"buffer_load_dwordx4 v[{UW+4*i}:{UW+4*i+3}], v2, s[{S_U}:{S_U+3}], s40 offen")
    a(f"""
; down: t<320: chunk = t%80 ; rgd = t/80 ; rows 32a + 8 rgd + i
v_mul_u32_u24 v11, 205, v0
v_lshrrev_b32 v11, 14, v11          ; t/80 (205/16384=0.012512) 
v_mul_u32_u24 v12, 80, v11
v_sub_u32 v12, v0, v12              ; chunk
v_lshlrev_b32 v13, 3, v11
s_lshl_b32 s39, s2, 5
v_add_u32 v13, s39, v13             ; row0
s_movk_i32 s38, 1280
v_mul_lo_u32 v13, v13, s38
v_lshlrev_b32 v14, 4, v12
v_add_u32 v3, v13, v14
v_mov_b32 v4, v11                   ; rgd
v_mov_b32 v5, v12                   ; chunk
s_cmp_ge_u32 s{S_WAVE}, 5
s_cbranch_scc1 K2A_NODL
""")
    for i in range(8):
        a(f"buffer_load_dwordx4 v[{DW+4*i}:{DW+4*i+3}], v3, s[{S_D}:{S_D+3}], 0 offen offset:{1280*(i%3)}" if False else
          f"s_mov_b32 s40, {1280*i}\nbuffer_load_dwordx4 v[{DW+4*i}:{DW+4*i+3}], v3, s[{S_D}:{S_D+3}], s40 offen")
    a("K2A_NODL:")
    ST2.stamp(a, 'issued', 1)
    emit_idx(a, 's_waitcnt vmcnt(18)')
    ST2.stamp(a, 'idx', 2)
    a(f"""
s_cmp_ge_u32 s{S_WAVE}, 2
s_cbranch_scc1 K2A_NOX
s_mul_i32 s38, s{S_IDX}, 1280
v_lshlrev_b32 v10, 4, v0
s_lshl_b32 s39, s{S_IDX}, 3
s_add_u32 s39, s39, {WS_STATS}
v_mov_b32 v11, 0
buffer_load_dwordx4 v[96:99], v10, s[{S_X}:{S_X+3}], s38 offen
buffer_load_dwordx2 v[100:101], v11, s[{S_WS}:{S_WS+3}], s39 offen
s_waitcnt vmcnt(0)
v_sub_f32 v102, 0, v100
""")
    for q in range(4):
        a(f"v_lshlrev_b32 v{104+2*q}, 16, v{96+q}")
        a(f"v_and_b32 v{105+2*q}, 0xffff0000, v{96+q}")
    for q in range(8):
        a(f"v_add_f32 v{104+q}, v{104+q}, v102")
    for q in range(4):
        a(f"v_cvt_pk_bf16_f32 v{96+q}, v{104+2*q}, v{105+2*q}")
    for q in range(4):
        a(f"v_lshlrev_b32 v{104+2*q}, 16, v{96+q}")
        a(f"v_and_b32 v{105+2*q}, 0xffff0000, v{96+q}")
    for q in range(8):
        a(f"v_mul_f32 v{104+q}, v{104+q}, v101")
    for q in range(4):
        a(f"v_cvt_pk_bf16_f32 v{96+q}, v{104+2*q}, v{105+2*q}")
    for q in range(4):
        a(f"v_lshlrev_b32 v{104+2*q}, 16, v{96+q}")
        a(f"v_and_b32 v{105+2*q}, 0xffff0000, v{96+q}")
    a(f"""
v_lshlrev_b32 v10, 5, v0
v_cmp_gt_u32 vcc, 80, v0
s_and_saveexec_b64 s[64:65], vcc
ds_write_b128 v10, v[104:107] offset:{L_XN}
ds_write_b128 v10, v[108:111] offset:{L_XN+16}
s_mov_b64 exec, s[64:65]
K2A_NOX:
s_waitcnt vmcnt(0) lgkmcnt(0)
s_barrier
""")
    ST2.stamp(a, 'xn', 3)
    a(f"""
v_lshrrev_b32 v10, 2, v0
v_lshlrev_b32 v10, 2, v10          ; rg*4
""")
    for i in range(5):
        a(f"ds_read_b32 v{96+i}, v10 offset:{L_XN + 512*i}")
    AG, AU = 104, 112
    for q in range(16):
        a(f"v_mov_b32 v{AG+q}, 0")
    a("s_waitcnt lgkmcnt(0)")
    for i in range(5):
        for (W, A) in ((GW, AG), (UW, AU)):
            for q in range(4):
                a(f"v_lshlrev_b32 v120, 16, v{W+4*i+q}")
                a(f"v_and_b32 v121, 0xffff0000, v{W+4*i+q}")
                a(f"v_fmac_f32 v{A+2*q}, v120, v{96+i}")
                a(f"v_fmac_f32 v{A+2*q+1}, v121, v{96+i}")
    for q in range(16):
        a("s_nop 1")
        a(f"v_add_f32_dpp v{AG+q}, v{AG+q}, v{AG+q} row_ror:4 row_mask:0xf bank_mask:0xf")
    for q in range(16):
        a("s_nop 1")
        a(f"v_add_f32_dpp v{AG+q}, v{AG+q}, v{AG+q} row_ror:8 row_mask:0xf bank_mask:0xf")
    for sw in ("v_permlane16_swap_b32", "v_permlane32_swap_b32"):
        for q in range(16):
            a(f"v_mov_b32 v{124+q}, v{AG+q}")
        a("s_nop 1")
        for q in range(16):
            a(f"{sw} v{AG+q}, v{124+q}")
        a("s_nop 1")
        for q in range(16):
            a(f"v_add_f32 v{AG+q}, v{AG+q}, v{124+q}")
    a(f"""
s_lshl_b32 s38, s{S_WAVE}, 8
v_lshlrev_b32 v10, 5, v{V_LANE}
v_add_u32 v10, s38, v10
s_mov_b64 exec, 0xf
ds_write_b128 v10, v[{AG}:{AG+3}] offset:{L_P}
ds_write_b128 v10, v[{AG+4}:{AG+7}] offset:{L_P+16}
ds_write_b128 v10, v[{AU}:{AU+3}] offset:{L_P+128}
ds_write_b128 v10, v[{AU+4}:{AU+7}] offset:{L_P+144}
s_mov_b64 exec, -1
s_waitcnt lgkmcnt(0)
s_barrier
s_cmp_lg_u32 s{S_WAVE}, 0
s_cbranch_scc1 K2A_NOH
v_and_b32 v10, 31, v{V_LANE}
v_lshlrev_b32 v10, 2, v10
""")
    for w in range(8):
        a(f"ds_read_b32 v{96+w}, v10 offset:{L_P + 256*w}")
        a(f"ds_read_b32 v{104+w}, v10 offset:{L_P + 256*w + 128}")
    a("s_waitcnt lgkmcnt(0)")
    for w in range(1, 8):
        a(f"v_add_f32 v96, v96, v{96+w}")
        a(f"v_add_f32 v104, v104, v{104+w}")
    a(f"""
v_cvt_pk_bf16_f32 v97, v96, v104
v_lshlrev_b32 v96, 16, v97            ; g_b
v_and_b32 v104, 0xffff0000, v97       ; u_b
v_mul_f32 v98, 0xbfb8aa3b, v96
v_exp_f32 v98, v98
s_nop 0
v_add_f32 v98, 1.0, v98
v_rcp_f32 v98, v98
s_nop 0
v_mul_f32 v98, v96, v98               ; silu
v_cvt_pk_bf16_f32 v98, v98, v98
v_and_b32 v98, 0xffff0000, v98
v_mul_f32 v98, v98, v104
v_cvt_pk_bf16_f32 v98, v98, v98
v_and_b32 v98, 0xffff0000, v98        ; h
s_mov_b32 exec_hi, 0
ds_write_b32 v10, v98 offset:{L_H}
s_mov_b64 exec, -1
K2A_NOH:
s_waitcnt lgkmcnt(0)
s_barrier
""")
    ST2.stamp(a, 'h', 4)
    a(f"""
s_cmp_ge_u32 s{S_WAVE}, 5
s_cbranch_scc1 K2A_NOD
v_lshlrev_b32 v10, 5, v4             ; rgd*8*4
ds_read_b128 v[96:99], v10 offset:{L_H}
ds_read_b128 v[100:103], v10 offset:{L_H+16}
""")
    for q in range(8):
        a(f"v_mov_b32 v{104+q}, 0")
    a("s_waitcnt lgkmcnt(0)")
    for i in range(8):
        for q in range(4):
            a(f"v_lshlrev_b32 v120, 16, v{DW+4*i+q}")
            a(f"v_and_b32 v121, 0xffff0000, v{DW+4*i+q}")
            a(f"v_fmac_f32 v{104+2*q}, v120, v{96+i}")
            a(f"v_fmac_f32 v{105+2*q}, v121, v{96+i}")
    a(f"""
v_mul_u32_u24 v10, 2560, v4
v_lshlrev_b32 v11, 5, v5
v_add_u32 v10, v10, v11
ds_write_b128 v10, v[104:107] offset:{L_Y}
ds_write_b128 v10, v[108:111] offset:{L_Y+16}
K2A_NOD:
s_waitcnt lgkmcnt(0)
s_barrier
s_cmp_ge_u32 s{S_WAVE}, 3
s_cbranch_scc1 K2A_NOS
v_lshlrev_b32 v10, 4, v0
ds_read_b128 v[96:99], v10 offset:{L_Y}
ds_read_b128 v[100:103], v10 offset:{L_Y+2560}
ds_read_b128 v[104:107], v10 offset:{L_Y+5120}
ds_read_b128 v[108:111], v10 offset:{L_Y+7680}
s_waitcnt lgkmcnt(0)
""")
    for q in range(4):
        a(f"v_add_f32 v{96+q}, v{96+q}, v{100+q}")
        a(f"v_add_f32 v{104+q}, v{104+q}, v{108+q}")
        a(f"v_add_f32 v{96+q}, v{96+q}, v{104+q}")
    a(f"""
s_mul_i32 s38, s2, 2560
s_add_u32 s38, s38, {WS_YPART}
v_cmp_gt_u32 vcc, 160, v0
s_and_saveexec_b64 s[64:65], vcc
buffer_store_dwordx4 v[96:99], v10, s[{S_WS}:{S_WS+3}], s38 offen sc0 sc1
s_mov_b64 exec, s[64:65]
s_waitcnt vmcnt(0)
K2A_NOS:
s_barrier
s_cmp_lg_u32 s{S_WAVE}, 0
s_cbranch_scc1 K2_END
v_mov_b32 v10, 0
v_mov_b32 v11, 1
s_mov_b64 exec, 1
buffer_atomic_add v11, v10, s[{S_DBG}:{S_DBG+3}], 0 offen
s_mov_b64 exec, -1
""")
    ST2.stamp(a, 'end', 5)
    ST2.flush(a, S_WS, WS_TS2, S_WAVE, "K2_TSF_A")
    a("s_branch K2_END")
```
